```python
import torch

def _softmax(x, axis=-1):
    return torch.softmax(x, dim=axis)
def _gelu(x):
    return torch.nn.functional.gelu(x, approximate="tanh")
def _silu(x):
    return torch.nn.functional.silu(x)
def _sigmoid(x):
    return torch.sigmoid(x)
def _layernorm(x, axis=-1, eps=1e-5):
    m = x.mean(dim=axis, keepdim=True)
    v = x.var(dim=axis, keepdim=True, unbiased=False)
    return (x - m) / torch.sqrt(v + eps)
def _scatter_add(tgt, idx, src, axis=0):
    return tgt.clone().index_add_(axis, idx, src)
def _segment_sum(src, seg, n):
    out = torch.zeros((n,) + src.shape[1:], dtype=src.dtype)
    return out.index_add_(0, seg, src)
def _pad(x, pw):
    flat = tuple(v for pair in reversed(pw) for v in pair)
    return torch.nn.functional.pad(x, flat)

kernel_name = 'standalone__window_attn_swin__vision'

def setup_inputs():

    _w = (lambda a: (lambda t: t.to(torch.bfloat16) if t.is_floating_point() else t)(torch.as_tensor(a)))
    H = W = 224
    C = 192
    ws = 7
    nh = 4
    shift = ws // 2
    coords = torch.stack(torch.meshgrid(torch.arange(ws), torch.arange(ws), indexing='ij'), 0).reshape(2, -1)
    rel = coords[:, :, None] - coords[:, None, :]
    rel[0] += ws - 1
    rel[1] += ws - 1
    rel[0] *= 2 * ws - 1
    rp_idx = rel.sum(0).to(torch.int64)
    img_mask = torch.zeros((1, H, W, 1), dtype=float)
    cnt = 0
    for hs in (slice(0, H - ws), slice(H - ws, H - shift), slice(H - shift, H)):
        for vs in (slice(0, W - ws), slice(W - ws, W - shift), slice(W - shift, W)):
            img_mask[:, hs, vs, :] = cnt
            cnt += 1
    mw = img_mask.reshape(1, H // ws, ws, W // ws, ws, 1).permute(0, 1, 3, 2, 4, 5).reshape(-1, ws * ws)
    am = mw[:, :, None] - mw[:, None, :]
    attn_mask = torch.where(am != 0, -100.0, 0.0).to(float)
    return {
        "x": _w((lambda *s: torch.randn(*s, dtype=torch.bfloat16) * 1.6)(1, H, W, C)),
        "wqkv": _w((lambda *s: torch.randn(*s, dtype=torch.bfloat16) * 1.6)(C, 3 * C) * 0.02),
        "wo": _w((lambda *s: torch.randn(*s, dtype=torch.bfloat16) * 0.05)(C, C) * 0.02),
        "rpb": _w((lambda *s: torch.randn(*s, dtype=torch.bfloat16) * 0.2)((2 * ws - 1) * (2 * ws - 1), nh)),
        "rp_idx": _w(rp_idx),
        "attn_mask": _w(attn_mask),
    }

def reference(x, wqkv, wo, rpb, rp_idx, attn_mask):
    B, H, W, C = x.shape
    N = rp_idx.shape[0]
    ws = int(round(N ** 0.5))
    nh = rpb.shape[-1]
    hd = C // nh
    shift = ws // 2
    xs = torch.roll(x, (-shift, -shift), (1, 2))
    nWh = H // ws
    nWw = W // ws
    xw = (lambda x, *d: x.permute(*d))(xs.reshape(B, nWh, ws, nWw, ws, C), 0, 1, 3, 2, 4, 5).reshape(B * nWh * nWw, N, C)
    qkv = (lambda x, *d: x.permute(*d))(torch.einsum('wnc,cd->wnd', xw, wqkv).reshape(-1, N, 3, nh, hd), 2, 0, 3, 1, 4)
    q, k, v = qkv[0], qkv[1], qkv[2]
    attn = torch.einsum('whid,whjd->whij', q, k) * (hd ** -0.5)
    bias = (lambda x, *d: x.permute(*d))(rpb[rp_idx.reshape(-1)].reshape(N, N, nh), 2, 0, 1)
    attn = attn + bias[None, :, :, :]
    attn = (attn.reshape(B, nWh * nWw, nh, N, N) + attn_mask[None, :, None, :, :]).reshape(-1, nh, N, N)
    attn = _softmax(attn, axis=-1)
    out = (lambda x, *d: x.permute(*d))(torch.einsum('whij,whjd->whid', attn, v), 0, 2, 1, 3).reshape(-1, N, C)
    out = torch.einsum('wnc,cd->wnd', out, wo)
    out = (lambda x, *d: x.permute(*d))(out.reshape(B, nWh, nWw, ws, ws, C), 0, 1, 3, 2, 4, 5).reshape(B, H, W, C)
    return torch.roll(out, (shift, shift), (1, 2))
```

```python
import heapq
import re

LGKM = 'lgkm'
VM = 'vm'


def regs(spec):
    if isinstance(spec, (list, tuple, set)):
        out = []
        for s in spec:
            out += regs(s)
        return out
    m = re.fullmatch(r'([vas])\[(\d+):(\d+)\]', spec)
    if m:
        return ['%s%d' % (m.group(1), i) for i in range(int(m.group(2)), int(m.group(3)) + 1)]
    return [spec]


def rng(kind, base, n):
    return '%s%d' % (kind, base) if n == 1 else '%s[%d:%d]' % (kind, base, base + n - 1)


class Op:
    __slots__ = ('text', 'kind', 'rd', 'wr', 'srcc', 'cnt', 'nasync', 'lat', 'after', 'after_done',
                 'idx', 'preds', 'succs', 'deadline', 'tag', 'order', 'issue', 'pos', 'states',
                 'store_data', 'nom', 'done_est', 'cover', 'npred', 'ready_t', 'sgpr_wr_by_valu',
                 'dur', 'earliest', 'bias', 'wanted')

    def __init__(self, text, kind, rd=(), wr=(), srcc=(), cnt=None, nasync=1, lat=None,
                 after=(), after_done=(), tag='', store_data=(), nom=None, earliest=0, bias=0):
        self.text = text if isinstance(text, list) else [text]
        self.kind = kind
        self.rd = regs(rd)
        self.wr = regs(wr)
        self.srcc = regs(srcc)
        self.cnt = cnt
        self.nasync = nasync if cnt else 0
        self.lat = lat
        self.after = list(after)
        self.after_done = list(after_done)
        self.tag = tag
        self.store_data = regs(store_data)
        self.nom = nom
        self.earliest = earliest
        self.bias = bias
        self.states = len(self.text)


class Prog:
    def __init__(self):
        self.ops = []

    def add(self, op):
        self.ops.append(op)
        return op

    def mfma(self, d, a, b, c, tag=''):
        rd = regs(a) + regs(b)
        srcc = []
        if c != '0' and c != 0:
            srcc = regs(c)
            rd += srcc
        return self.add(Op('v_mfma_f32_16x16x32_bf16 %s, %s, %s, %s' % (d, a, b, c), 'mfma',
                           rd=rd, wr=d, srcc=srcc, tag=tag))

    def valu(self, text, rd, wr, tag='', kind='valu', **kw):
        return self.add(Op(text, kind, rd=rd, wr=wr, tag=tag, **kw))

    def salu(self, text, rd=(), wr=(), tag='', **kw):
        return self.add(Op(text, 'salu', rd=rd, wr=wr, tag=tag, **kw))

    def ds(self, text, rd, wr, tag='', lat=128, **kw):
        return self.add(Op(text, 'ds', rd=rd, wr=wr, cnt=LGKM, lat=lat, tag=tag, **kw))

    def vmem(self, text, rd, wr, tag='', lat=2000, **kw):
        return self.add(Op(text, 'vmem', rd=rd, wr=wr, cnt=VM, lat=lat, tag=tag, **kw))

    def barrier(self, after_done=(), after=(), tag=''):
        return self.add(Op('s_barrier', 'barrier', after=after, after_done=after_done, tag=tag))


VECTOR = ('mfma', 'valu', 'trans', 'swap', 'ds', 'vmem')
VALUISH = ('valu', 'trans', 'swap')


class Edge:
    __slots__ = ('p', 'lat', 'states', 'done')

    def __init__(self, p, lat, states, done):
        self.p, self.lat, self.states, self.done = p, lat, states, done


def is_sgpr(r):
    return r[0] == 's' or r in ('vcc', 'm0', 'exec', 'scc')


def raw_edge(p, c, r):
    if p.cnt:
        return (0, 0, True)
    if p.kind == 'mfma':
        if c.kind == 'mfma' and r in c.srcc and c.srcc == p.wr:
            return (16, 0, False)
        if c.kind == 'mfma' and r in c.srcc:
            return (32, 8, False)
        return (32, 8, False)
    if p.kind in VALUISH:
        if is_sgpr(r):
            if c.kind in ('vmem', 'ds'):
                return (24, 5, False)
            if c.kind in VALUISH or c.kind == 'mfma':
                return (12, 2, False)
            return (16, 3, False)
        if c.kind == 'mfma':
            return (12, 2, False)
        if c.kind == 'swap':
            return (12, 2, False)
        if c.kind in ('ds', 'vmem'):
            return (12, 0, False)
        if 'readfirstlane' in c.text[0] or 'readlane' in c.text[0]:
            return (8, 1, False)
        if p.kind == 'trans':
            return (12, 1, False)
        if p.kind == 'swap':
            return (12, 1, False)
        return (8, 0, False)
    if p.kind in ('salu', 'barrier'):
        if r == 'm0':
            return (8, 1, False)
        return (4, 0, False)
    return (4, 0, False)


def war_edge(p, c, r):
    if p.kind == 'mfma' and r in p.srcc and c.kind != 'mfma':
        return (16, 3, False)
    if p.kind == 'mfma' and r in p.srcc and c.kind == 'mfma':
        return (4, 0, False)
    if r in p.store_data:
        return (12, 2, False)
    return (4, 0, False)


def waw_edge(p, c, r):
    if p.cnt:
        return (0, 0, True)
    if p.kind == 'mfma' and c.kind != 'mfma':
        return (32, 8, False)
    if p.kind == 'mfma' and c.kind == 'mfma':
        if c.srcc == p.wr:
            return (16, 0, False)
        return (16, 0, False)
    if p.kind in VALUISH and is_sgpr(r) and c.kind == 'salu':
        return (16, 3, False)
    return (4, 0, False)


def build_deps(ops):
    last_w = {}
    readers = {}
    for i, op in enumerate(ops):
        op.idx = i
        op.preds = {}
        op.succs = []
    for op in ops:
        def add(p, e):
            if p is op:
                return
            old = op.preds.get(p.idx)
            if old is None:
                op.preds[p.idx] = Edge(p, *e)
            else:
                old.lat = max(old.lat, e[0])
                old.states = max(old.states, e[1])
                old.done = old.done or e[2]
        rd = list(op.rd)
        if op.kind in VECTOR:
            rd.append('exec')
        for r in rd:
            if r in last_w:
                add(last_w[r], raw_edge(last_w[r], op, r))
        for r in op.wr:
            if r in last_w:
                add(last_w[r], waw_edge(last_w[r], op, r))
            for p in readers.get(r, ()):
                add(p, war_edge(p, op, r))
        for p in op.after:
            add(p, (4, 0, False))
        for p in op.after_done:
            add(p, (0, 0, bool(p.cnt)))
        for r in rd:
            readers.setdefault(r, []).append(op)
        for r in op.wr:
            last_w[r] = op
            readers[r] = []
    for op in ops:
        for e in op.preds.values():
            e.p.succs.append(op)


DUR = {'mfma': 8, 'valu': 4, 'trans': 8, 'swap': 8, 'ds': 4, 'vmem': 4, 'salu': 0, 'barrier': 0}


def compute_deadlines(ops, mfma_period=16):
    k = 0
    for op in ops:
        if op.kind == 'mfma':
            op.nom = k * mfma_period
            k += 1
    horizon = k * mfma_period + 4000
    k = 0
    for op in ops:
        if op.kind == 'mfma':
            k += 1
        op.deadline = op.nom if op.kind == 'mfma' else k * mfma_period + 1500
    for op in reversed(ops):
        d = op.deadline
        for s in op.succs:
            e = s.preds[op.idx]
            lat = e.lat
            if e.done:
                lat = max(lat, op.lat or 0)
            d = min(d, s.deadline - max(lat, 4))
        op.deadline = d + op.bias
    return horizon


class Emitted:
    __slots__ = ('text', 'kind', 'op', 'time', 'free')

    def __init__(self, text, kind, op=None, time=0, free=False):
        self.text, self.kind, self.op, self.time, self.free = text, kind, op, time, free


def waitcnt_text(vm, lg):
    parts = []
    if vm is not None:
        parts.append('vmcnt(%d)' % min(vm, 63))
    if lg is not None:
        parts.append('lgkmcnt(%d)' % min(lg, 15))
    return 's_waitcnt ' + ' '.join(parts)


class Scheduler:
    def __init__(self, ops, lookahead=48, sequential=False, verbose=False):
        self.ops = ops
        self.lookahead = lookahead
        self.sequential = sequential
        self.verbose = verbose
        self.out = []
        self.nstates = 0
        self.free_slots = []
        self.t = 0
        self.t_mfma = -100
        self.t_vec = 0
        self.t_valu = -100
        self.inflight = {LGKM: [], VM: []}
        self.stall = 0

    def states_between(self, p):
        return self.nstates - p.pos

    def need_states(self, op):
        need = 0
        for e in op.preds.values():
            if e.states:
                need = max(need, e.states - self.states_between(e.p))
        return need

    def materialise(self, op):
        for e in op.preds.values():
            if not e.states:
                continue
            while e.states - self.states_between(e.p) > 0:
                slot = None
                for em in reversed(self.out):
                    if em.op is e.p:
                        break
                    if em.free:
                        slot = em
                        break
                if slot is None:
                    break
                slot.free = False
                slot.text = ['s_nop 0']
                slot.kind = 'nop'
                self._recount()

    def _recount(self):
        n = 0
        for em in self.out[self._base_idx:]:
            if em.op is not None:
                em.op.pos = self._base_cnt + n + (0 if em.free else self._nst(em))
            if not em.free:
                n += self._nst(em)
        self.nstates = self._base_cnt + n

    @staticmethod
    def _nst(em):
        if em.kind == 'nop':
            return sum(int(t.split()[1]) + 1 for t in em.text)
        return len(em.text)

    def _rebase(self):
        if len(self.out) - self._base_idx > 160:
            newb = len(self.out) - 64
            n = 0
            for em in self.out[self._base_idx:newb]:
                if not em.free:
                    n += self._nst(em)
            self._base_idx = newb
            self._base_cnt += n

    def avail_free(self, op):
        worst = 0
        for e in op.preds.values():
            if not e.states:
                continue
            short = e.states - self.states_between(e.p)
            if short <= 0:
                continue
            cnt = 0
            for em in reversed(self.out):
                if em.op is e.p:
                    break
                if em.free:
                    cnt += 1
            worst = max(worst, short - cnt)
        return worst

    def emit(self, text, kind, op=None, free=False):
        em = Emitted(text if isinstance(text, list) else [text], kind, op, self.t, free)
        self.out.append(em)
        if not free:
            self.nstates += self._nst(em)
        if op is not None:
            op.pos = self.nstates
        self._rebase()
        return em

    def emit_wait(self, upto):
        vm = lg = None
        t_done = self.t
        for cnt, op in upto.items():
            fl = self.inflight[cnt]
            i = fl.index(op)
            rest = fl[i + 1:]
            n = sum(o.nasync for o in rest)
            for o in fl[:i + 1]:
                o.cover = True
                t_done = max(t_done, o.done_est)
            self.inflight[cnt] = rest
            if cnt == VM:
                vm = n
            else:
                lg = n
        self.emit(waitcnt_text(vm, lg), 'wait')
        if t_done > self.t:
            self.stall += t_done - self.t
        self.t = max(self.t, t_done) + 4

    def uncovered(self, op):
        res = {}
        for e in op.preds.values():
            if e.done and e.p.cnt and not e.p.cover:
                fl = self.inflight[e.p.cnt]
                cur = res.get(e.p.cnt)
                if cur is None or fl.index(e.p) > fl.index(cur):
                    res[e.p.cnt] = e.p
        return res

    def ready_time(self, op):
        t = op.earliest
        for e in op.preds.values():
            if e.done and e.p.cnt:
                t = max(t, e.p.done_est)
            else:
                t = max(t, e.p.issue + e.lat)
        return t

    def issue_time(self, op):
        t = max(self.t, op.ready_t)
        k = op.kind
        if k == 'mfma':
            t = max(t, self.t_mfma + 16, self.t_vec)
        elif k in VALUISH:
            t = max(t, self.t_vec)
        elif k in ('ds', 'vmem'):
            t = max(t, self.t_vec, self.t_valu + 12)
        return t

    def do_issue(self, op):
        unc = self.uncovered(op)
        if unc:
            self.emit_wait(unc)
        self.materialise(op)
        short = self.need_states(op)
        if short > 0:
            self.emit(['s_nop %d' % (short - 1)], 'nop')
            self.t += 4 * short
        if op.cnt:
            cap = 15 if op.cnt == LGKM else 63
            fl = self.inflight[op.cnt]
            while sum(o.nasync for o in fl) + op.nasync > cap:
                self.emit_wait({op.cnt: fl[0]})
                fl = self.inflight[op.cnt]
        t = self.issue_time(op)
        self.t = t
        self.emit(op.text, op.kind, op)
        op.issue = t
        n = len(op.text)
        k = op.kind
        if k == 'mfma':
            self.t_mfma = t
            self.t_vec = t + 8
            self.t = t + 4
        elif k in VALUISH:
            self.t_vec = t + DUR[k]
            self.t_valu = t + (4 if DUR[k] == 8 else 0)
            self.t = t + 4
        elif k in ('ds', 'vmem'):
            self.t_vec = t + 4 * n
            self.t = t + 4 * n
        else:
            self.t = t + 4 * n
        if op.cnt:
            fl = self.inflight[op.cnt]
            prev = fl[-1].done_est if fl else 0
            op.done_est = max(t + op.lat, prev)
            op.cover = False
            fl.append(op)
        op.order = self.count
        self.count += 1
        for s in op.succs:
            s.npred -= 1
            if s.npred == 0:
                s.ready_t = self.ready_time(s)
                self.ready.append(s)

    def opportunistic_wait(self):
        upto = {}
        for cnt, fl in self.inflight.items():
            last = None
            for o in fl:
                if o.done_est <= self.t:
                    last = o
                else:
                    break
            if last is not None and any(o.wanted for o in fl[:fl.index(last) + 1]):
                upto[cnt] = last
        if upto:
            self.emit_wait(upto)
            return True
        return False

    def run(self):
        ops = self.ops
        build_deps(ops)
        compute_deadlines(ops)
        self._base_idx = 0
        self._base_cnt = 0
        self.count = 0
        for op in ops:
            op.npred = len(op.preds)
            op.issue = None
            op.pos = -1000
            op.cover = True
            op.done_est = 0
            op.wanted = any(x.preds[op.idx].done for x in op.succs)
        self.ready = [op for op in ops if op.npred == 0]
        for op in self.ready:
            op.ready_t = op.earliest
        if self.sequential:
            for op in ops:
                assert op.npred == 0, op.text
                self.ready.remove(op)
                self.do_issue(op)
            return self.out
        n_left = len(ops)
        mf_order = [op for op in ops if op.kind == 'mfma']
        mf_ptr = 0
        while n_left:
            while mf_ptr < len(mf_order) and mf_order[mf_ptr].issue is not None:
                mf_ptr += 1
            lim = mf_order[min(mf_ptr + self.lookahead, len(mf_order) - 1)].nom if mf_ptr < len(mf_order) else 1 << 60
            cands = self.ready
            best_m = None
            for op in cands:
                if op.kind == 'mfma' and op.nom <= lim:
                    ti = self.issue_time(op)
                    if self.uncovered(op):
                        ti = max(ti, self.t + 4)
                    sh = self.avail_free(op)
                    if sh > 0:
                        ti = max(ti, self.t + 4 * sh)
                    key = (max(ti, self.t_mfma + 16), op.nom)
                    if best_m is None or key < best_m[0]:
                        best_m = (key, op, ti)
            tm = best_m[2] if best_m else None
            free_turn = self.t < self.t_vec
            others = [op for op in cands if op.kind != 'mfma']
            chosen = None
            if free_turn:
                sc = [op for op in others if op.kind in ('salu', 'barrier') and op.ready_t <= self.t
                      and not self.uncovered(op) and self.need_states(op) <= 0]
                if sc:
                    chosen = min(sc, key=lambda o: o.deadline)
                elif self.opportunistic_wait():
                    continue
                else:
                    self.emit([], 'free', free=True)
                    self.t = self.t_vec if self.t_vec - self.t <= 4 else self.t + 4
                    continue
            if chosen is None:
                best = None
                for op in others:
                    ti = self.issue_time(op)
                    extra = 0
                    if self.uncovered(op):
                        extra = 4
                    sh = self.avail_free(op)
                    if sh > 0:
                        extra += 4 * sh
                    ti = max(ti, self.t + extra)
                    end = ti + (DUR[op.kind] if op.kind in VECTOR else 4) + 4 * (len(op.text) - 1)
                    fits = tm is None or end <= tm
                    late = op.deadline < self.t_nom(mf_order, mf_ptr)
                    if fits:
                        key = (0, op.deadline, ti)
                    elif late and ti <= tm:
                        key = (0, op.deadline, ti)
                    else:
                        continue
                    if ti > self.t + 8 and tm is not None and ti >= tm:
                        continue
                    if best is None or key < best[0]:
                        best = (key, op, ti)
                if best is not None:
                    now = [b for b in [best] if b[2] <= self.t + 4]
                    if not now:
                        alt = None
                        for op in others:
                            ti = self.issue_time(op)
                            if self.uncovered(op) or self.avail_free(op) > 0:
                                continue
                            end = ti + (DUR[op.kind] if op.kind in VECTOR else 4) + 4 * (len(op.text) - 1)
                            if ti <= self.t and (tm is None or end <= min(tm, best[2])):
                                if alt is None or op.deadline < alt.deadline:
                                    alt = op
                        if alt is not None:
                            best = (None, alt, self.t)
                    chosen = best[1]
                elif best_m is not None:
                    chosen = best_m[1]
                else:
                    chosen = min(cands, key=lambda o: (self.issue_time(o), o.deadline))
            self.ready.remove(chosen)
            self.do_issue(chosen)
            n_left -= 1
        return self.out

    def t_nom(self, mf_order, mf_ptr):
        if mf_ptr < len(mf_order):
            return mf_order[mf_ptr].nom
        return 1 << 60


def render(out, comments=False):
    lines = []
    for em in out:
        if em.free:
            continue
        for t in em.text:
            if comments and em.op is not None:
                lines.append('    %-70s ; t=%d %s' % (t, em.time, em.op.tag))
            else:
                lines.append('    ' + t)
    return lines


def verify(out):
    seq = []
    for em in out:
        if em.free:
            continue
        seq.append(em)
    pos = 0
    for em in seq:
        n = Scheduler._nst(em)
        if em.op is not None:
            em.op.pos = pos + n
            start = pos
            for e in em.op.preds.values():
                gap = start - e.p.pos
                assert e.p.pos <= start, ('order', em.op.text, e.p.text)
                assert gap >= e.states, ('states', em.op.text, e.p.text, gap, e.states)
        pos += n
    fl = {LGKM: [], VM: []}
    done = set()
    for em in seq:
        if em.kind == 'wait':
            txt = em.text[0]
            for cnt, pat in ((VM, r'vmcnt\((\d+)\)'), (LGKM, r'lgkmcnt\((\d+)\)')):
                m = re.search(pat, txt)
                if m:
                    n = int(m.group(1))
                    lst = fl[cnt]
                    while sum(o.nasync for o in lst) > n:
                        done.add(lst.pop(0).idx)
        elif em.op is not None:
            for e in em.op.preds.values():
                if e.done and e.p.cnt:
                    assert e.p.idx in done, ('uncovered', em.op.text, e.p.text)
            if em.op.cnt:
                fl[em.op.cnt].append(em.op)
    return True
```

```python
import sys
import math
from asmlib import Prog, Op, Scheduler, render, verify, rng, regs, LGKM, VM

KNAME = 'standalone__window_attn_swin__vision_kernel'

TOTAL = 224 * 224 * 384
ROWB = 224 * 384
WINB = 7 * 384
XB = (0, 18432)
BT = 36864
TS = 90112
XE = 93184
OREG = 94720
OE_OFF, OB_OFF = 0, (6144, 6144 + 18432)
SLOT = [94720 + 12288 * i for i in range(2)] + [119296 + 12288 * i for i in range(3)]
LDS_BYTES = 156160
SQRT48 = math.sqrt(48.0)
CEXP = math.log2(math.e) / SQRT48
PA, PAN, PB = 0x3EF441D2, 0xBEF4C1D2, 0x3F8041D3
NEGBIG = 0xC6EA6000


def f2u(x):
    import struct
    return struct.unpack('<I', struct.pack('<f', x))[0]


def KA(kt): return rng('v', 8 * kt, 4)
def KB(kt): return rng('v', 8 * kt + 4, 4)
def QA(qt): return rng('v', 32 + 8 * qt, 4)
def QB(qt): return rng('v', 36 + 8 * qt, 4)
def VV(td, ks): return rng('v', 64 + 8 * td + 4 * ks, 4)
ONES = 'v[88:91]'
WOV = 92
SP = (124, 140)
OX = (156, 164)
ACCP = [172 + 4 * i for i in range(7)]
ACCO = [200 + 4 * i for i in range(3)]
FR = [212 + 4 * i for i in range(6)]
XOFF = [236 + j for j in range(5)]
OO4 = [241, 242, 243]
OO2 = [244, 245, 246]
XRE, XRO, L16O, L16B, OW128, OW64, FX, NEG, SPARE = 247, 248, 249, 250, 251, 252, 253, 254, 255
WV = [88, 89, 90]
TRB = 91
WVO = OO2
TRBOA, XEB, TRBOB = 241, 242, 255


def WK(tc, s): return 0 + (tc * 6 + s) * 4
def WQ(tc, s): return 72 + (tc * 6 + s) * 4
def WVv(tc, s): return 144 + (tc * 6 + s) * 4


def WO(tc, f):
    i = tc * 6 + f
    return ('a', 216 + 4 * i) if i < 10 else ('v', WOV + 4 * (i - 10))


def areg(b, n=4): return rng('a', b, n)
def v(b, n=1): return rng('v', b, n)


S_X, S_W, S_WO, S_RPB, S_OUT = 's[16:19]', 's[20:23]', 's[24:27]', 's[28:31]', 's[32:35]'
S_H, S_WH, S_C, S_BASE = 's36', 's37', 's38', 's40'
S_TY, S_TX3 = 's39', 's41'
S_WOFF = ['0', 's42', 's43', '0']
S_XM, S_STM = 's45', 's46'
S_TMP = ['s%d' % i for i in range(47, 54)]
S_LO32 = 's[54:55]'
def S_MG(w): return 's[%d:%d]' % (56 + 2 * w, 57 + 2 * w)
def S_MN(w): return 's[%d:%d]' % (64 + 2 * w, 65 + 2 * w)
S_ME = 's[72:73]'
S_ADJ = 's74'
S_BAD = 's[76:77]'
S_T2 = ['s%d' % i for i in range(78, 90)]


STAMP = ['s3', 's92', 's93', 's94', 's95', 's96', 's97', 's98', 's99', 's100', 's101', 's75']


class Rot:
    def __init__(self, items):
        self.items, self.i = items, 0

    def next(self):
        r = self.items[self.i % len(self.items)]
        self.i += 1
        return r


class Gen:
    def __init__(self, truemax=True, st4='', st2='', dbg=None):
        self.p = Prog()
        self.truemax = truemax
        self.st4, self.st2 = st4, st2
        self.dbg = dbg
        self.fr = Rot(FR)
        self.accp = Rot(ACCP)
        self.stmp = Rot(S_TMP)
        self.slot_last = {}
        self.xreads = {w: [] for w in range(4)}
        self.xdma = {w: [] for w in range(4)}
        self.oreads = {w: [] for w in list(range(4)) + ['E']}
        self.owrites = {w: [] for w in list(range(4)) + ['E']}
        self.stage_reads = []
        self.bar = {}
        self.stamps = ['start']

    def va(self, text, rd, wr, tag='', **kw):
        return self.p.valu(text, rd, wr, tag, **kw)

    def sa(self, text, rd=(), wr=(), tag='', **kw):
        return self.p.salu(text, rd, wr, tag, **kw)

    def div7(self, dst_y, dst_x, tk, tmp):
        self.va('v_mul_u32_u24 %s, 37, %s' % (dst_y, tk), [tk], [dst_y])
        self.va('v_lshrrev_b32 %s, 8, %s' % (dst_y, dst_y), [dst_y], [dst_y])
        self.va('v_mul_u32_u24 %s, 7, %s' % (tmp, dst_y), [dst_y], [tmp])
        self.va('v_sub_u32 %s, %s, %s' % (dst_x, tk, tmp), [tk, tmp], [dst_x])

    def pixoff(self, dst, y, x, tmp):
        self.va('v_mul_u32_u24 %s, 0x%x, %s' % (dst, ROWB, y), [y], [dst])
        self.va('v_mul_u32_u24 %s, 384, %s' % (tmp, x), [x], [tmp])
        self.va('v_add_u32 %s, %s, %s' % (dst, dst, tmp), [dst, tmp], [dst])

    def wrapy(self, dst, tmp):
        self.va('v_add_u32 %s, %s, %s' % (dst, S_BASE, dst), [dst, S_BASE], [dst])
        self.va('v_subrev_u32 %s, 0x%x, %s' % (tmp, TOTAL, dst), [dst], [tmp])
        self.va('v_min_u32 %s, %s, %s' % (dst, dst, tmp), [dst, tmp], [dst])

    def stamp(self, after, name):
        if not self.dbg:
            return
        k = len(self.stamps)
        self.stamps.append(name)
        self.sa(['s_memtime s[90:91]', 's_waitcnt lgkmcnt(0)', 's_mov_b32 %s, s90' % STAMP[k]], [], ['s90', 's91'],
                'stamp ' + name, after=after)

    def lane_ids(self, l, n, g):
        self.va('v_mbcnt_lo_u32_b32 %s, -1, 0' % l, [], [l])
        self.va('v_mbcnt_hi_u32_b32 %s, -1, %s' % (l, l), [l], [l])
        self.va('v_and_b32 %s, 15, %s' % (n, l), [l], [n])
        self.va('v_lshrrev_b32 %s, 4, %s' % (g, l), [l], [g])

    def entry_text(self):
        return """    s_cmp_ge_u32 s2, 256
    s_cbranch_scc1 L_end
    s_load_dwordx4 s[4:7], s[0:1], 0
    s_load_dwordx4 s[8:11], s[0:1], 16
    s_load_dwordx2 s[12:13], s[0:1], 48
    s_load_dwordx2 s[14:15], s[0:1], 56
    v_lshrrev_b32 v1, 6, v0
    s_nop 0
    v_readfirstlane_b32 s36, v1
    s_nop 3""".split('\n') + (['    s_memtime s[90:91]', '    s_waitcnt lgkmcnt(0)', '    s_mov_b32 s3, s90'] if self.dbg else [])

    def exit_text(self):
        if not self.dbg:
            return []
        n = len(self.stamps)
        t = ['    s_waitcnt vmcnt(0)', '    s_memtime s[90:91]', '    s_waitcnt lgkmcnt(0)',
             '    s_cmp_eq_u32 s36, 0', '    s_cbranch_scc0 L_end',
             '    s_cmp_eq_u32 s2, %d' % self.dbg[0], '    s_cbranch_scc1 L_dbg0',
             '    s_cmp_eq_u32 s2, %d' % self.dbg[1], '    s_cbranch_scc0 L_end',
             '    s_add_u32 s14, s14, 64', '    s_addc_u32 s15, s15, 0', 'L_dbg0:',
             '    v_mov_b32 v0, 0']
        for k in range(1, n):
            t += ['    s_sub_u32 s4, %s, s3' % STAMP[k], '    v_mov_b32 v1, s4', '    global_store_dword v0, v1, s[14:15] offset:%d' % (4 * k)]
        t += ['    s_sub_u32 s4, s90, s3', '    v_mov_b32 v1, s4', '    global_store_dword v0, v1, s[14:15] offset:%d' % (4 * n)]
        return t

    def scalars(self):
        sa = self.sa
        sa('s_lshr_b32 s37, s2, 3', ['s2'], [S_WH])
        sa(['s_mul_i32 s40, s37, %d' % (7 * ROWB), 's_and_b32 s47, s2, 7', 's_mul_i32 s47, s47, %d' % (4 * WINB),
            's_add_u32 s40, s40, s47', 's_add_u32 s40, s40, %d' % (3 * ROWB + 3 * 384)], ['s2', S_WH], [S_BASE, 's47'])
        sa(['s_cmp_eq_u32 s37, 31', 's_cselect_b32 s39, 1, 0'], [S_WH], [S_TY])
        sa(['s_and_b32 s47, s2, 7', 's_cmp_eq_u32 s47, 7', 's_cselect_b32 s41, 1, 0',
            's_mul_i32 s74, s41, %d' % ROWB], ['s2'], [S_TX3, S_ADJ, 's47'])
        sa('s_mov_b32 s38, 0x%08x' % f2u(CEXP), [], [S_C])
        for w in (1, 2):
            sa('s_mov_b32 %s, %d' % (S_WOFF[w], w * WINB), [], [S_WOFF[w]])
        sa('s_mul_i32 s45, s36, 4608', [S_H], [S_XM])
        sa('s_mul_i32 s46, s36, 3072', [S_H], [S_STM])
        sa(['s_mov_b32 s54, -1', 's_mov_b32 s55, 0'], [], [S_LO32])
        for w in range(4):
            m = 0xFFFF << (16 * w)
            sa(['s_mov_b32 s%d, 0x%x' % (56 + 2 * w, m & 0xFFFFFFFF), 's_mov_b32 s%d, 0x%x' % (57 + 2 * w, m >> 32)], [], [S_MG(w)])
            m = 0x000F000F << (4 * w)
            sa(['s_mov_b32 s%d, 0x%x' % (64 + 2 * w, m), 's_mov_b32 s%d, 0x%x' % (65 + 2 * w, m)], [], [S_MN(w)])
        sa(['s_mov_b32 s72, 0x11111111', 's_mov_b32 s73, 0x11111111'], [], [S_ME])
        sa(['s_mov_b32 s76, 0', 's_mov_b32 s77, 0'], [], [S_BAD])
        kw = sa('s_waitcnt lgkmcnt(0)', [], ['s[4:15]'], earliest=450)
        for srd, ptr, size in ((16, 4, TOTAL), (20, 6, 221184), (24, 8, 73728), (28, 10, 1352), (32, 12, TOTAL)):
            sa(['s_mov_b32 s%d, s%d' % (srd, ptr), 's_and_b32 s%d, s%d, 0xffff' % (srd + 1, ptr + 1),
                's_mov_b32 s%d, 0x%x' % (srd + 2, size), 's_mov_b32 s%d, 0x20000' % (srd + 3)],
               ['s%d' % ptr, 's%d' % (ptr + 1)], ['s[%d:%d]' % (srd, srd + 3)])

    def addresses(self):
        va = self.va
        L, N, G = 'v64', 'v65', 'v66'
        self.L, self.N, self.G = L, N, G
        self.lane_ids(L, N, G)
        t = ['v%d' % i for i in range(67, 80)]
        self.sa(['s_mul_i32 s47, s37, 54', 's_mul_i32 s48, s36, 14', 's_add_u32 s47, s47, s48'], [S_WH, S_H], ['s47', 's48'])
        va('v_add_u32 %s, s47, %s' % (t[0], L), ['s47', L], [t[0]])
        va('v_lshlrev_b32 %s, 7, %s' % (t[0], t[0]), [t[0]], [t[0]])
        va('v_cmp_gt_u32 vcc, 14, %s' % L, [L], ['vcc'])
        va('v_cndmask_b32 %s, -1, %s, vcc' % (t[0], t[0]), [t[0], 'vcc'], [t[0]])
        self.p.vmem('buffer_load_dword %s, %s, %s, 0 offen' % (t[1], t[0], S_W), [t[0], S_W], [t[1]], 'pf W', lat=1500)
        self.sa(['s_mul_i32 s47, s37, 18', 's_mul_i32 s48, s36, 5', 's_add_u32 s47, s47, s48'], [S_WH, S_H], ['s47', 's48'])
        va('v_add_u32 %s, s47, %s' % (t[2], L), ['s47', L], [t[2]])
        va('v_lshlrev_b32 %s, 7, %s' % (t[2], t[2]), [t[2]], [t[2]])
        va('v_cmp_gt_u32 vcc, 5, %s' % L, [L], ['vcc'])
        va('v_cndmask_b32 %s, -1, %s, vcc' % (t[2], t[2]), [t[2], 'vcc'], [t[2]])
        self.p.vmem('buffer_load_dword %s, %s, %s, 0 offen' % (t[3], t[2], S_WO), [t[2], S_WO], [t[3]], 'pf Wo', lat=1500)
        self.rpb = ['v80', 'v81', 'v82']
        va('v_lshlrev_b32 %s, 3, %s' % (t[4], L), [L], [t[4]])
        self.sa('s_lshl_b32 s49, s36, 1', [S_H], ['s49'])
        va('v_add_u32 %s, s49, %s' % (t[4], t[4]), ['s49', t[4]], [t[4]])
        for j in range(3):
            self.p.vmem('buffer_load_ushort %s, %s, %s, 0 offen offset:%d' % (self.rpb[j], t[4], S_RPB, 512 * j),
                        [t[4], S_RPB], [self.rpb[j]], 'rpb', lat=1700)
        self.sa(['s_mul_i32 s50, s36, %d' % WINB, 's_add_u32 s50, s50, s40', 's_add_u32 s50, s50, %d' % (6 * ROWB + 6 * 384),
                 's_mul_i32 s51, s39, %d' % TOTAL, 's_sub_u32 s50, s50, s51',
                 's_cmp_eq_u32 s36, 3', 's_cselect_b32 s51, s74, 0', 's_sub_u32 s50, s50, s51',
                 's_mul_i32 s51, s36, 384', 's_add_u32 s51, s51, %d' % XE],
                [S_H, S_BASE, S_TY, S_ADJ], ['s50', 's51'])
        va('v_lshlrev_b32 %s, 4, %s' % (t[5], L), [L], [t[5]])
        self.sa('s_mov_b32 m0, s51', ['s51'], ['m0'])
        self.xe_dma = self.p.vmem(['s_mov_b32 exec_lo, 0xffffff', 's_mov_b32 exec_hi, 0',
                                   'buffer_load_dwordx4 %s, %s, s50 offen lds' % (t[5], S_X),
                                   's_mov_b64 exec, -1'],
                                  [t[5], S_X, 's50', 'm0'], [], 'xE dma', lat=1800)
        P, TK, RM, Y, X_, A, B = t[6:13]
        self.sa('s_mul_i32 s52, s36, 288', [S_H], ['s52'])
        va('v_mov_b32 %s, 0' % v(FX), [], [v(FX)])
        for j in range(5):
            va('v_add_u32 %s, s52, %s' % (P, L), ['s52', L], [P])
            if j:
                va('v_add_u32 %s, %d, %s' % (P, 64 * j, P), [P], [P])
            va('v_mul_u32_u24 %s, 2731, %s' % (TK, P), [P], [TK])
            va('v_lshrrev_b32 %s, 16, %s' % (TK, TK), [TK], [TK])
            va('v_mul_u32_u24 %s, 24, %s' % (A, TK), [TK], [A])
            va('v_sub_u32 %s, %s, %s' % (RM, P, A), [P, A], [RM])
            va('v_bfe_u32 %s, %s, 1, 3' % (A, TK), [TK], [A])
            va('v_xor_b32 %s, %s, %s' % (RM, RM, A), [RM, A], [RM])
            self.div7(Y, X_, TK, A)
            d = v(XOFF[j])
            self.pixoff(d, Y, X_, A)
            va('v_lshl_add_u32 %s, %s, 4, %s' % (d, RM, d), [RM, d], [d])
            self.wrapy(d, A)
            va('v_add_u32 %s, 4, %s' % (A, X_), [X_], [A])
            va('v_lshrrev_b32 %s, 3, %s' % (A, A), [A], [A])
            va('v_lshl_or_b32 %s, %s, %d, %s' % (v(FX), A, j, v(FX)), [A, v(FX)], [v(FX)])
        self.x_dma(0)
        va('v_mul_u32_u24 %s, 384, %s' % (A, N), [N], [A])
        va('v_bfe_u32 %s, %s, 1, 3' % (B, N), [N], [B])
        va('v_xor_b32 %s, %s, %s' % (B, B, G), [B, G], [B])
        va('v_lshl_add_u32 %s, %s, 4, %s' % (v(XRE), B, A), [A, B], [v(XRE)])
        va('v_xor_b32 %s, 64, %s' % (v(XRO), v(XRE)), [v(XRE)], [v(XRO)])
        va('v_lshlrev_b32 %s, 4, %s' % (A, L), [L], [A])
        va('v_add_u32 %s, 0x%x, %s' % (v(L16O), OREG, A), [A], [v(L16O)])
        self.sa(['s_mul_i32 s53, s36, 13312', 's_add_u32 s53, s53, %d' % BT], [S_H], ['s53'])
        va('v_add_u32 %s, s53, %s' % (v(L16B), A), ['s53', A], [v(L16B)])
        self.sa('s_lshl_b32 s78, s36, 10', [S_H], ['s78'])
        va('v_add_u32 %s, s78, %s' % (v(OW128), v(L16O)), ['s78', v(L16O)], [v(OW128)])
        self.sa(['s_lshr_b32 s79, s36, 1', 's_lshl_b32 s79, s79, 10', 's_and_b32 s80, s36, 1', 's_lshl_b32 s80, s80, 3',
                 's_add_u32 s79, s79, s80', 's_add_u32 s79, s79, 4096'], [S_H], ['s79', 's80'])
        va('v_add_u32 %s, s79, %s' % (v(OW64), v(L16O)), ['s79', v(L16O)], [v(OW64)])
        va('v_lshrrev_b32 %s, 2, %s' % (A, N), [N], [A])
        va('v_mul_u32_u24 %s, 384, %s' % (A, A), [A], [A])
        va('v_lshl_add_u32 %s, %s, 4, %s' % (A, G, A), [G, A], [A])
        va('v_add_u32 %s, 0x%x, %s' % (v(XEB), XE, A), [A], [v(XEB)])
        va('v_mov_b32 %s, 0x%x' % (v(NEG), NEGBIG), [], [v(NEG)])
        self.sa('s_mul_i32 s81, s36, 96', [S_H], ['s81'])
        self.sa(['s_lshl_b32 s82, s36, 6', 's_lshl_b32 s83, s36, 5', 's_add_u32 s83, s83, 192'], [S_H], ['s82', 's83'])
        for j in range(3):
            va('v_add_u32 %s, %d, %s' % (P, 64 * j, L), [L], [P])
            va('v_mul_u32_u24 %s, 43691, %s' % (TK, P), [P], [TK])
            va('v_lshrrev_b32 %s, 18, %s' % (TK, TK), [TK], [TK])
            va('v_mul_u32_u24 %s, 6, %s' % (A, TK), [TK], [A])
            va('v_sub_u32 %s, %s, %s' % (RM, P, A), [P, A], [RM])
            d = v(WVO[j])
            va('v_cmp_gt_u32 vcc, 4, %s' % RM, [RM], ['vcc'])
            va('v_mov_b32 %s, s83' % A, ['s83'], [A])
            va('v_mov_b32 %s, s82' % B, ['s82'], [B])
            va('v_cndmask_b32 %s, %s, %s, vcc' % (A, A, B), [A, B, 'vcc'], [A])
            va('v_lshl_add_u32 %s, %s, 4, %s' % (A, RM, A), [RM, A], [A])
            va('v_mul_u32_u24 %s, 384, %s' % (d, TK), [TK], [d])
            va('v_add_u32 %s, %s, %s' % (d, d, A), [d, A], [d])
            d = v(WV[j])
            va('v_and_b32 %s, 0x13, %s' % (Y, TK), [TK], [Y])
            va('v_bfe_u32 %s, %s, 3, 1' % (A, TK), [TK], [A])
            va('v_lshl_or_b32 %s, %s, 2, %s' % (Y, A, Y), [A, Y], [Y])
            va('v_bfe_u32 %s, %s, 2, 1' % (A, TK), [TK], [A])
            va('v_lshl_or_b32 %s, %s, 3, %s' % (Y, A, Y), [A, Y], [Y])
            va('v_mul_u32_u24 %s, 1152, %s' % (d, Y), [Y], [d])
            va('v_lshl_add_u32 %s, %s, 4, %s' % (d, RM, d), [RM, d], [d])
            va('v_add_u32 %s, s81, %s' % (d, d), ['s81', d], [d])
        self.sa('s_add_u32 s84, s46, %d' % SLOT[0], [S_STM], ['s84'])
        va('v_lshrrev_b32 %s, 2, %s' % (A, N), [N], [A])
        va('v_and_b32 %s, 3, %s' % (B, N), [N], [B])
        va('v_and_b32 %s, 1, %s' % (Y, G), [G], [Y])
        va('v_lshl_add_u32 %s, %s, 2, %s' % (Y, Y, A), [Y, A], [Y])
        va('v_lshrrev_b32 %s, 1, %s' % (X_, G), [G], [X_])
        va('v_lshl_add_u32 %s, %s, 4, %s' % (Y, X_, Y), [X_, Y], [Y])
        va('v_mul_u32_u24 %s, 96, %s' % (Y, Y), [Y], [Y])
        va('v_lshl_add_u32 %s, %s, 3, %s' % (Y, B, Y), [B, Y], [Y])
        va('v_add_u32 %s, s84, %s' % (v(TRB), Y), ['s84', Y], [v(TRB)])
        va('v_lshl_add_u32 %s, %s, 2, %s' % (Y, G, A), [G, A], [Y])
        va('v_mul_u32_u24 %s, 96, %s' % (Y, Y), [Y], [Y])
        va('v_add_u32 %s, s84, %s' % (Y, Y), ['s84', Y], [Y])
        va('v_lshl_add_u32 %s, %s, 4, %s' % (v(TRBOA), B, Y), [B, Y], [v(TRBOA)])
        va('v_lshl_add_u32 %s, %s, 3, %s' % (Y, B, Y), [B, Y], [Y])
        va('v_add_u32 %s, 64, %s' % (v(TRBOB), Y), [Y], [v(TRBOB)])

    def x_dma(self, w, after=()):
        ops = []
        for j in range(5):
            self.sa('s_add_u32 m0, s45, %d' % (XB[w & 1] + 1024 * j), [S_XM], ['m0'], after=after)
            ld = 'buffer_load_dwordx4 %s, %s, %s offen lds' % (v(XOFF[j]), S_X, S_WOFF[w])
            rd = [v(XOFF[j]), S_X, 'm0'] + ([S_WOFF[w]] if S_WOFF[w] != '0' else [])
            if j < 4:
                ops.append(self.p.vmem(ld, rd, [], 'x dma w%d' % w, lat=2500, after=after))
            else:
                ops.append(self.p.vmem(['s_mov_b64 exec, %s' % S_LO32, ld, 's_mov_b64 exec, -1'],
                                       rd + [S_LO32], [], 'x dma w%d' % w, lat=2500, after=after))
        self.xdma[w] = ops

    def x_adjust(self):
        t = v(FR[5])
        for j in range(5):
            self.va('v_bfe_u32 %s, %s, %d, 1' % (t, v(FX), j), [v(FX)], [t], 'xadj')
            self.va('v_mul_u32_u24 %s, s74, %s' % (t, t), [S_ADJ, t], [t], 'xadj')
            self.va('v_sub_u32 %s, %d, %s' % (t, 3 * WINB, t), [t], [t], 'xadj')
            self.va('v_add_u32 %s, %s, %s' % (v(XOFF[j]), v(XOFF[j]), t), [v(XOFF[j]), t], [v(XOFF[j])], 'xadj')

    def mask_consts(self):
        va = self.va
        L, N, G = self.L, self.N, self.G
        TK, Y, X_, A, B, C = 'v67', 'v68', 'v69', 'v70', 'v71', 'v72'
        self.sa('s_mov_b32 s85, 0x%x' % PA, [], ['s85'])
        self.sa('s_mov_b32 s86, 0x%x' % PB, [], ['s86'])
        va('v_cmp_eq_u32 vcc, 0, %s' % G, [G], ['vcc'])
        va('v_mov_b32 %s, 0x%x' % (C, PAN), [], [C])
        for kt in range(4):
            va('v_cndmask_b32 v%d, 0, %s, vcc' % (8 * kt + 7, C), [C, 'vcc'], ['v%d' % (8 * kt + 7)])
        for kt in range(4):
            if kt < 3:
                va('v_add_u32 %s, %d, %s' % (TK, 16 * kt, N), [N], [TK])
                self.div7(Y, X_, TK, A)
                va('v_add_u32 %s, 4, %s' % (X_, X_), [X_], [X_])
                va('v_lshrrev_b32 %s, 3, %s' % (X_, X_), [X_], [X_])
                va('v_add_u32 %s, 4, %s' % (Y, Y), [Y], [Y])
                va('v_lshrrev_b32 %s, 3, %s' % (Y, Y), [Y], [Y])
                va('v_lshl_add_u32 %s, %s, 1, %s' % (A, Y, X_), [Y, X_], [A])
                va('v_cmp_eq_u32 vcc, %s, %s' % (A, G), [A, G], ['vcc'])
                va('v_lshrrev_b32 %s, 1, %s' % (B, G), [G], [B])
                va('v_xor_b32 %s, %s, %s' % (B, B, Y), [B, Y], [B])
                va('v_xor_b32 %s, 1, %s' % (B, B), [B], [B])
                va('v_lshl_or_b32 %s, %s, %d, %s' % (v(FX), B, 8 + 2 * kt, v(FX)), [B, v(FX)], [v(FX)])
                va('v_and_b32 %s, 1, %s' % (B, G), [G], [B])
                va('v_xor_b32 %s, %s, %s' % (B, B, X_), [B, X_], [B])
                va('v_xor_b32 %s, 1, %s' % (B, B), [B], [B])
                va('v_lshl_or_b32 %s, %s, %d, %s' % (v(FX), B, 9 + 2 * kt, v(FX)), [B, v(FX)], [v(FX)])
                va('v_lshl_or_b32 %s, %s, %d, %s' % (v(FX), X_, 16 + kt, v(FX)), [X_, v(FX)], [v(FX)])
            else:
                va('v_cmp_eq_u32 vcc, 3, %s' % G, [G], ['vcc'])
            va('v_mov_b32 %s, s85' % B, ['s85'], [B])
            va('v_cndmask_b32 v%d, 0, %s, vcc' % (8 * kt + 6, B), [B, 'vcc'], ['v%d' % (8 * kt + 6)])
        self.y_consts(False)
        A, B, C = 'v70', 'v71', 'v72'
        va('v_lshrrev_b32 %s, 2, %s' % (A, N), [N], [A])
        va('v_cmp_eq_u32 vcc, 3, %s' % A, [A], ['vcc'])
        va('v_mov_b32 %s, s41' % B, [S_TX3], [B])
        va('v_cndmask_b32 %s, 0, %s, vcc' % (A, B), [B, 'vcc'], [A])
        va('v_or_b32 %s, s39, %s' % (C, A), [S_TY, A], [C])
        self.sa('s_xor_b32 s87, s39, 1', [S_TY], ['s87'])
        va('v_lshrrev_b32 %s, 1, %s' % (B, G), [G], [B])
        va('v_or_b32 %s, s87, %s' % (B, B), ['s87', B], [B])
        va('v_and_b32 %s, %s, %s' % (B, B, C), [B, C], [B])
        va('v_xor_b32 %s, 1, %s' % (A, A), [A], [A])
        va('v_and_b32 %s, 1, %s' % (Y, G), [G], [Y])
        va('v_or_b32 %s, %s, %s' % (A, A, Y), [A, Y], [A])
        va('v_and_b32 %s, %s, %s' % (B, B, A), [B, A], [B])
        va('v_sub_u32 %s, 0, %s' % (B, B), [B], [B])
        va('v_and_b32 v62, s86, %s' % B, ['s86', B], ['v62'])
        va('v_cmp_eq_u32 vcc, 0, %s' % G, [G], ['vcc'])
        va('v_cndmask_b32 %s, 0, %s, vcc' % (C, C), [C, 'vcc'], [C])
        va('v_sub_u32 %s, 0, %s' % (C, C), [C], [C])
        va('v_and_b32 v63, s86, %s' % C, ['s86', C], ['v63'])

    def y_consts(self, last):
        va = self.va
        if last:
            A, B, G = v(FR[5]), v(FR[5] + 1), v(FR[5] + 2)
            va('v_mbcnt_lo_u32_b32 %s, -1, 0' % G, [], [G], 'yadj')
            va('v_mbcnt_hi_u32_b32 %s, -1, %s' % (G, G), [G], [G], 'yadj')
            va('v_lshrrev_b32 %s, 4, %s' % (G, G), [G], [G], 'yadj')
            self.sa(['s_xor_b32 s88, s41, 1', 's_or_b32 s89, s39, s41'], [S_TY, S_TX3], ['s88', 's89'], 'yadj')
            ntx, anym = 's88', 's89'
        else:
            A, B, G = 'v70', 'v71', self.G
            self.sa(['s_mov_b32 s88, 1', 's_mov_b32 s89, s39'], [S_TY], ['s88', 's89'])
            ntx, anym = 's88', 's89'
        self.sa('s_xor_b32 s87, s39, 1', [S_TY], ['s87'])
        for qt in range(3):
            va('v_bfe_u32 %s, %s, %d, 1' % (A, v(FX), 8 + 2 * qt), [v(FX)], [A], 'y')
            va('v_or_b32 %s, s87, %s' % (A, A), ['s87', A], [A], 'y')
            va('v_bfe_u32 %s, %s, %d, 1' % (B, v(FX), 9 + 2 * qt), [v(FX)], [B], 'y')
            va('v_or_b32 %s, %s, %s' % (B, ntx, B), [ntx, B], [B], 'y')
            va('v_and_b32 %s, %s, %s' % (A, A, B), [A, B], [A], 'y')
            va('v_and_b32 %s, %s, %s' % (A, anym, A), [anym, A], [A], 'y')
            va('v_sub_u32 %s, 0, %s' % (A, A), [A], [A], 'y')
            va('v_and_b32 v%d, s86, %s' % (32 + 8 * qt + 6, A), ['s86', A], ['v%d' % (32 + 8 * qt + 6)], 'y')
        va('v_cmp_eq_u32 vcc, 0, %s' % G, [G], ['vcc'], 'y')
        va('v_mov_b32 %s, %s' % (A, anym), [anym], [A], 'y')
        va('v_cndmask_b32 %s, 0, %s, vcc' % (A, A), [A, 'vcc'], [A], 'y')
        va('v_sub_u32 %s, 0, %s' % (A, A), [A], [A], 'y')
        for qt in range(3):
            va('v_and_b32 v%d, s86, %s' % (32 + 8 * qt + 7, A), ['s86', A], ['v%d' % (32 + 8 * qt + 7)], 'y')

    def bias_table(self):
        va, ds = self.va, self.p.ds
        L, N, G = self.L, self.N, self.G
        A, B, TK = 'v70', 'v71', 'v72'
        s0 = SP[0]
        AQ = ['v%d' % (s0 + i) for i in range(4)]
        AK = ['v%d' % (s0 + 4 + i) for i in range(12)]
        GD = [s0 + 16, s0 + 20, s0 + 24]
        AD = ['v%d' % (s0 + 28 + i) for i in range(4)]
        self.sa(['s_mul_i32 s75, s36, 768', 's_add_u32 s75, s75, %d' % TS], [S_H], ['s75'])
        va('v_lshlrev_b32 %s, 2, %s' % (A, L), [L], [A])
        va('v_add_u32 %s, s75, %s' % (A, A), ['s75', A], [A])
        wr = []
        for j in range(3):
            r = self.rpb[j]
            va('v_lshlrev_b32 %s, 16, %s' % (r, r), [r], [r])
            va('v_mul_f32 %s, 0x%08x, %s' % (r, f2u(SQRT48), r), [r], [r])
            wr.append(ds('ds_write_b32 %s, %s offset:%d' % (A, r, 256 * j), [A, r], [], 'T small'))

        def a_of(dst, tk):
            va('v_mul_u32_u24 %s, 37, %s' % (dst, tk), [tk], [dst])
            va('v_lshrrev_b32 %s, 8, %s' % (dst, dst), [dst], [dst])
            va('v_mul_u32_u24 %s, 6, %s' % (dst, dst), [dst], [dst])
            va('v_add_lshl_u32 %s, %s, %s, 2' % (dst, dst, tk), [dst, tk], [dst])
        for qt in range(3):
            va('v_add_u32 %s, %d, %s' % (TK, 16 * qt, N), [N], [TK])
            a_of(AQ[qt], TK)
            va('v_add_u32 %s, s75, %s' % (AQ[qt], AQ[qt]), ['s75', AQ[qt]], [AQ[qt]])
        va('v_mov_b32 %s, s75' % AQ[3], ['s75'], [AQ[3]])
        va('v_add_u32 %s, 336, %s' % (AQ[3], AQ[3]), [AQ[3]], [AQ[3]])
        for kt in range(3):
            for r in range(4):
                va('v_lshl_add_u32 %s, %s, 2, %d' % (TK, G, 16 * kt + r), [G], [TK])
                a_of(AK[4 * kt + r], TK)
        self.bt_writes = []
        gd = Rot(GD)
        ad = Rot(AD)
        for qt in range(4):
            for kt in range(3):
                d = gd.next()
                for r in range(4):
                    a = ad.next()
                    va('v_sub_u32 %s, %s, %s' % (a, AQ[qt], AK[4 * kt + r]), [AQ[qt], AK[4 * kt + r]], [a])
                    ds('ds_read_b32 %s, %s offset:336' % (v(d + r), a), [a], [v(d + r)], 'gather', after=wr)
                self.bt_writes.append(ds('ds_write_b128 %s, %s offset:%d' % (v(L16B), v(d, 4), (qt * 3 + kt) * 1024),
                                         [v(L16B), v(d, 4)], [], 'BT'))
        d = gd.next()
        for qt in range(4):
            ds('ds_read_b32 %s, %s' % (v(d + qt), AQ[qt]), [AQ[qt]], [v(d + qt)], 'gatherE', after=wr)
        self.bt_writes.append(ds('ds_write_b128 %s, %s offset:%d' % (v(L16B), v(d, 4), 12 * 1024),
                                 [v(L16B), v(d, 4)], [], 'BT'))

    def stage_dma(self, u):
        slot = u % 5 if u < 18 else (3, 4, 2)[(u - 18) % 3]
        prev = self.slot_last.get(slot, [])
        ops = []
        st = self.stmp.next()
        if u < 18:
            cb = (384, 0, 768)[u // 6]
            self.sa('s_mov_b32 %s, %d' % (st, (u % 6) * 32 * 1152 + cb), [], [st])
            srd, offs = S_W, WV
        else:
            self.sa('s_mov_b32 %s, %d' % (st, (u - 18) * 32 * 384), [], [st])
            srd, offs = S_WO, WVO
        for j in range(3):
            self.sa('s_add_u32 m0, s46, %d' % (SLOT[slot] + 1024 * j), [S_STM], ['m0'])
            ops.append(self.p.vmem('buffer_load_dwordx4 %s, %s, %s offen lds' % (v(offs[j]), srd, st),
                                   [v(offs[j]), srd, st, 'm0'], [], 'stage dma u%d' % u,
                                   lat=self.stage_lat(u, j), after_done=prev))
        self.stage_ops = getattr(self, 'stage_ops', {})
        self.stage_ops[u] = (slot, ops)

    def stage_lat(self, u, j):
        return 1600 if u < 5 else 900

    def stage_read(self, u):
        slot, dmas = self.stage_ops[u]
        base = SLOT[slot] - SLOT[0]
        reads = []
        if u < 18:
            s = u % 6
            fn = (WK, WQ, WVv)[u // 6]
            for tc in range(3):
                for hf in range(2):
                    d = areg(fn(tc, s) + 2 * hf, 2)
                    reads.append(self.p.ds('ds_read_b64_tr_b16 %s, %s offset:%d' % (d, v(TRB), base + 768 * hf + 32 * tc),
                                           [v(TRB)], [d], 'tr u%d' % u, after_done=dmas))
        else:
            up = u - 18
            rb = {}
            for f in range(4):
                rb[(f, 0)], rb[(f, 1)] = 48 * f, 48 * f + 16
            rb[(4, 0)], rb[(4, 1)], rb[(5, 0)], rb[(5, 1)] = 32, 80, 128, 176
            for (f, hf), r0 in sorted(rb.items(), key=lambda kv: kv[1]):
                if r0 >> 5 != up:
                    continue
                for tc in range(3):
                    k, b = WO(tc, f)
                    d = rng(k, b + 2 * hf, 2)
                    a, off = (v(TRBOA), 8 * tc) if tc < 2 else (v(TRBOB), 0)
                    reads.append(self.p.ds('ds_read_b64_tr_b16 %s, %s offset:%d' % (d, a, base + 96 * (r0 & 16) + off),
                                           [a], [d], 'tr u%d' % u, after_done=dmas))
        self.slot_last[slot] = reads
        self.stage_reads += reads
        return reads

    def xfrag(self, w, t, s, after):
        f = self.fr.next()
        if t == 3:
            op = self.p.ds('ds_read_b128 %s, %s offset:%d' % (v(f, 4), v(XEB), 64 * s), [v(XEB)], [v(f, 4)],
                           'xE s%d' % s, after=after)
            self.xe_reads.append(op)
        else:
            base = v(XRO) if s & 1 else v(XRE)
            op = self.p.ds('ds_read_b128 %s, %s offset:%d' % (v(f, 4), base, XB[w & 1] + t * 6144 + (s >> 1) * 128),
                           [base], [v(f, 4)], 'x w%d t%d s%d' % (w, t, s), after=after)
            self.xreads[w].append(op)
        return v(f, 4)

    def cvt(self, dst, a, b, tag=''):
        return self.va('v_cvt_pk_bf16_f32 %s, %s, %s' % (dst, a, b), [x for x in (a, b) if x[0] == 'v'], [dst], tag)

    def cvt_kq(self, base, tc, acc, tag):
        d = base + (2 * tc if tc < 2 else 4)
        self.cvt(v(d), v(acc), v(acc + 1), tag)
        self.cvt(v(d + 1), v(acc + 2), v(acc + 3), tag)

    def cvt_v(self, t, td, acc, tag):
        d = 64 + 8 * td + 4 * (t >> 1) + 2 * (t & 1)
        self.cvt(v(d), v(acc), v(acc + 1), tag)
        self.cvt(v(d + 1), v(acc + 2), v(acc + 3), tag)

    def pass_smajor(self, mat, w, after):
        u0 = {'K': 0, 'Q': 6, 'V': 12}[mat]
        fn = {'K': WK, 'Q': WQ, 'V': WVv}[mat]
        pool = ACCP + ACCO + [OX[0], OX[0] + 4]
        acc = {(t, tc): pool[3 * t + tc] for t in range(4) for tc in range(3)}
        for s in range(6):
            u = u0 + s
            self.stage_read(u)
            nxt = u + 5
            if nxt < 18:
                self.stage_dma(nxt)
            for t in (3, 0, 1, 2):
                f = self.xfrag(w, t, s, after)
                for tc in range(3):
                    a = v(acc[(t, tc)], 4)
                    wreg = areg(fn(tc, s))
                    c = a if s else '0'
                    if mat == 'V':
                        self.p.mfma(a, f, wreg, c, '%s p t%d s%d' % (mat, t, s))
                    else:
                        self.p.mfma(a, wreg, f, c, '%s p t%d s%d' % (mat, t, s))
        for t in (3, 0, 1, 2):
            for tc in range(3):
                if mat == 'K':
                    self.cvt_kq(8 * t, tc, acc[(t, tc)], 'cvtK')
                elif mat == 'Q':
                    self.cvt_kq(32 + 8 * t, tc, acc[(t, tc)], 'cvtQ')
                else:
                    self.cvt_v(t, tc, acc[(t, tc)], 'cvtV')

    def kq_tile(self, w, t, after):
        acc = [self.accp.next() for _ in range(6)]
        for s in range(6):
            f = self.xfrag(w, t, s, after)
            for i in range(6):
                tc = i % 3
                a = v(acc[i], 4)
                wreg = areg((WK if i < 3 else WQ)(tc, s))
                self.p.mfma(a, wreg, f, a if s else '0', 'KQ w%d t%d s%d' % (w, t, s))
        for i in range(6):
            self.cvt_kq((8 * t) if i < 3 else (32 + 8 * t), i % 3, acc[i], 'cvtKQ w%d t%d' % (w, t))

    def v_tile(self, w, t, after):
        acc = [self.accp.next() for _ in range(3)]
        for s in range(6):
            f = self.xfrag(w, t, s, after)
            for td in range(3):
                a = v(acc[td], 4)
                self.p.mfma(a, f, areg(WVv(td, s)), a if s else '0', 'V w%d t%d s%d' % (w, t, s))
        for td in range(3):
            self.cvt_v(t, td, acc[td], 'cvtV w%d t%d' % (w, t))

    def s_tile(self, w, q, slot):
        sp = SP[slot]
        for kt in range(3):
            self.p.ds('ds_read_b128 %s, %s offset:%d' % (v(sp + 4 * kt, 4), v(L16B), (q * 3 + kt) * 1024),
                      [v(L16B)], [v(sp + 4 * kt, 4)], 'bias w%d q%d' % (w, q), after=self.bt_writes)
        self.p.ds('ds_read_b32 %s, %s offset:%d' % (v(sp + 12), v(L16B), 12288 + 4 * q),
                  [v(L16B)], [v(sp + 12)], 'biasE w%d q%d' % (w, q), after=self.bt_writes)
        self.va('v_cndmask_b32 %s, %s, %s, %s' % (v(sp + 12), v(NEG), v(sp + 12), S_MG(w)),
                [v(NEG), v(sp + 12), S_MG(w)], [v(sp + 12)], 'maskE')
        for kt in range(4):
            a = v(sp + 4 * kt, 4)
            self.p.mfma(a, KA(kt), QA(q), a, 'S w%d q%d' % (w, q))
        for kt in range(4):
            a = v(sp + 4 * kt, 4)
            self.p.mfma(a, KB(kt), QB(q), a, 'S w%d q%d' % (w, q))

    def softmax(self, w, q, slot):
        va = self.va
        sp = SP[slot]
        s = [v(sp + i) for i in range(13)]
        m, t = v(sp + 13), v(sp + 14)
        tag = 'SM w%d q%d' % (w, q)
        if self.truemax:
            va('v_max3_f32 %s, %s, %s, %s' % (m, s[0], s[1], s[2]), s[0:3], [m], tag)
            va('v_max3_f32 %s, %s, %s, %s' % (t, s[3], s[4], s[5]), s[3:6], [t], tag)
            va('v_max3_f32 %s, %s, %s, %s' % (m, m, s[6], s[7]), [m, s[6], s[7]], [m], tag)
            va('v_max3_f32 %s, %s, %s, %s' % (t, t, s[8], s[9]), [t, s[8], s[9]], [t], tag)
            va('v_max3_f32 %s, %s, %s, %s' % (m, m, s[10], s[11]), [m, s[10], s[11]], [m], tag)
            va('v_max3_f32 %s, %s, %s, %s' % (m, m, t, s[12]), [m, t, s[12]], [m], tag)
            for sw in ('v_permlane32_swap_b32', 'v_permlane16_swap_b32'):
                va('v_mov_b32 %s, %s' % (t, m), [m], [t], tag)
                va('%s %s, %s' % (sw, m, t), [m, t], [m, t], tag, kind='swap')
                va('v_max_f32 %s, %s, %s' % (m, m, t), [m, t], [m], tag)
            va('v_mul_f32 %s, %s, %s' % (m, S_C, m), [S_C, m], [m], tag)
            for x in s:
                va('v_fma_f32 %s, %s, %s, -%s' % (x, x, S_C, m), [x, S_C, m], [x], tag)
                va('v_exp_f32 %s, %s' % (x, x), [x], [x], tag, kind='trans')
        else:
            for x in s:
                va('v_mul_f32 %s, %s, %s' % (x, S_C, x), [x, S_C], [x], tag)
                va('v_exp_f32 %s, %s' % (x, x), [x], [x], tag, kind='trans')
        for i in range(6):
            self.cvt(v(sp + i), s[2 * i], s[2 * i + 1], tag)
        self.cvt(v(sp + 6), s[12], '0', tag)
        va('v_mov_b32 %s, 0' % v(sp + 7), [], [v(sp + 7)], tag)

    def pv(self, w, q, slot):
        sp, ox = SP[slot], OX[slot]
        acc = [sp + 8, sp + 12, ox]
        p0, p1 = v(sp, 4), v(sp + 4, 4)
        tag = 'PV w%d q%d' % (w, q)
        sm = v(ox + 4, 4)
        self.p.mfma(sm, ONES, p0, '0', tag)
        for td in range(3):
            self.p.mfma(v(acc[td], 4), VV(td, 0), p0, '0', tag)
        self.p.mfma(sm, ONES, p1, sm, tag)
        for td in range(3):
            self.p.mfma(v(acc[td], 4), VV(td, 1), p1, v(acc[td], 4), tag)

    def post(self, w, q, slot, after):
        va = self.va
        sp, ox = SP[slot], OX[slot]
        acc = [sp + 8, sp + 12, ox]
        r = v(ox + 4)
        tag = 'post w%d q%d' % (w, q)
        if not self.truemax:
            t = v(ox + 5)
            va('v_subrev_u32 %s, 0x1f800000, %s' % (t, r), [r], [t], tag)
            va('v_cmp_lt_u32 vcc, 0x40000000, %s' % t, [t], ['vcc'], tag)
            if q == 3:
                self.sa(['s_and_b64 vcc, vcc, %s' % S_MN(w), 's_or_b64 %s, %s, vcc' % (S_BAD, S_BAD)],
                        ['vcc', S_MN(w), S_BAD], [S_BAD, 'vcc'], tag)
            else:
                self.sa('s_or_b64 %s, %s, vcc' % (S_BAD, S_BAD), ['vcc', S_BAD], [S_BAD], tag)
        va('v_rcp_f32 %s, %s' % (r, r), [r], [r], tag, kind='trans')
        for td in range(3):
            for i in range(4):
                x = v(acc[td] + i)
                va('v_mul_f32 %s, %s, %s' % (x, x, r), [x, r], [x], tag)
        d = sp + 8
        self.cvt(v(d), v(acc[0]), v(acc[0] + 1), tag)
        self.cvt(v(d + 1), v(acc[0] + 2), v(acc[0] + 3), tag)
        self.cvt(v(d + 2), v(acc[1]), v(acc[1] + 1), tag)
        self.cvt(v(d + 3), v(acc[1] + 2), v(acc[1] + 3), tag)
        self.cvt(v(ox), v(ox), v(ox + 1), tag)
        self.cvt(v(ox + 1), v(ox + 2), v(ox + 3), tag)
        if q == 3:
            txt = ['s_mov_b64 exec, %s' % S_MN(w),
                   'ds_write_b128 %s, %s offset:%d' % (v(OW128), v(d, 4), OE_OFF),
                   'ds_write_b64 %s, %s offset:%d' % (v(OW64), v(ox, 2), OE_OFF),
                   's_mov_b64 exec, -1']
            op = self.p.ds(txt, [v(OW128), v(OW64), v(d, 4), v(ox, 2), S_MN(w)], [], tag, nasync=2, after=after)
            self.owrites['E'].append(op)
        else:
            off = OB_OFF[w & 1] + q * 6144
            self.owrites[w].append(self.p.ds('ds_write_b128 %s, %s offset:%d' % (v(OW128), v(d, 4), off),
                                             [v(OW128), v(d, 4)], [], tag, after=after))
            self.owrites[w].append(self.p.ds('ds_write_b64 %s, %s offset:%d' % (v(OW64), v(ox, 2), off),
                                             [v(OW64), v(ox, 2)], [], tag, after=after))

    def out_offsets(self):
        va = self.va
        L, N, G, TK, Y, X_, A = [v(FR[4] + i) for i in range(4)] + [v(FR[5] + i) for i in range(3)]
        self.lane_ids(L, N, G)
        self.sa(['s_lshl_b32 s82, s36, 6', 's_lshl_b32 s83, s36, 5', 's_add_u32 s83, s83, 256'], [S_H], ['s82', 's83'])
        for t in range(3):
            va('v_add_u32 %s, %d, %s' % (TK, 16 * t, N), [N], [TK], 'ooff')
            self.div7(Y, X_, TK, A)
            d = v(OO4[t])
            self.pixoff(d, Y, X_, A)
            self.wrapy(d, A)
            va('v_lshl_add_u32 %s, %s, 3, %s' % (v(OO2[t]), G, d), [G, d], [v(OO2[t])], 'ooff')
            va('v_add_u32 %s, s83, %s' % (v(OO2[t]), v(OO2[t])), ['s83', v(OO2[t])], [v(OO2[t])], 'ooff')
            va('v_lshl_add_u32 %s, %s, 4, %s' % (d, G, d), [G, d], [d], 'ooff')
            va('v_add_u32 %s, s82, %s' % (d, d), ['s82', d], [d], 'ooff')

    def out_adjust(self):
        a = v(FR[5])
        for t in range(3):
            self.va('v_bfe_u32 %s, %s, %d, 1' % (a, v(FX), 16 + t), [v(FX)], [a], 'oadj')
            self.va('v_mul_u32_u24 %s, s74, %s' % (a, a), [S_ADJ, a], [a], 'oadj')
            self.va('v_sub_u32 %s, %d, %s' % (a, 3 * WINB, a), [a], [a], 'oadj')
            self.va('v_add_u32 %s, %s, %s' % (v(OO4[t]), v(OO4[t]), a), [v(OO4[t]), a], [v(OO4[t])], 'oadj')
            self.va('v_add_u32 %s, %s, %s' % (v(OO2[t]), v(OO2[t]), a), [v(OO2[t]), a], [v(OO2[t])], 'oadj')

    def out_offsets_e(self):
        va = self.va
        L, N, G, A, B = [v(FR[4] + i) for i in range(4)] + [v(FR[5])]
        self.lane_ids(L, N, G)
        d4, d2 = v(OO4[0]), v(OO2[0])
        self.sa(['s_add_u32 s78, s40, %d' % (6 * ROWB + 6 * 384), 's_mul_i32 s79, s39, %d' % TOTAL,
                 's_sub_u32 s78, s78, s79'], [S_BASE, S_TY], ['s78', 's79'])
        va('v_lshrrev_b32 %s, 2, %s' % (A, N), [N], [A], 'eoff')
        va('v_mul_u32_u24 %s, %d, %s' % (d4, WINB, A), [A], [d4], 'eoff')
        va('v_add_u32 %s, s78, %s' % (d4, d4), ['s78', d4], [d4], 'eoff')
        va('v_cmp_eq_u32 vcc, 3, %s' % A, [A], ['vcc'], 'eoff')
        va('v_mov_b32 %s, s74' % B, [S_ADJ], [B], 'eoff')
        va('v_cndmask_b32 %s, 0, %s, vcc' % (B, B), [B, 'vcc'], [B], 'eoff')
        va('v_sub_u32 %s, %s, %s' % (d4, d4, B), [d4, B], [d4], 'eoff')
        va('v_lshl_add_u32 %s, %s, 3, %s' % (d2, G, d4), [G, d4], [d2], 'eoff')
        va('v_add_u32 %s, s83, %s' % (d2, d2), ['s83', d2], [d2], 'eoff')
        va('v_lshl_add_u32 %s, %s, 4, %s' % (d4, G, d4), [G, d4], [d4], 'eoff')
        va('v_add_u32 %s, s82, %s' % (d4, d4), ['s82', d4], [d4], 'eoff')

    def out_tile(self, w, t, after):
        isE = (w == 'E')
        base = OE_OFF if isE else OB_OFF[w & 1] + t * 6144
        tag = 'OUT w%s t%d' % (w, t)
        acc = ACCO
        for f in range(6):
            fr = self.fr.next()
            op = self.p.ds('ds_read_b128 %s, %s offset:%d' % (v(fr, 4), v(L16O), base + 1024 * f),
                           [v(L16O)], [v(fr, 4)], tag, after=after)
            self.oreads[w].append(op)
            for tc in range(3):
                k, b = WO(tc, f)
                a = v(acc[tc], 4)
                self.p.mfma(a, rng(k, b, 4), v(fr, 4), a if f else '0', tag)
        d = acc[0]
        self.cvt(v(d), v(acc[0]), v(acc[0] + 1), tag)
        self.cvt(v(d + 1), v(acc[0] + 2), v(acc[0] + 3), tag)
        self.cvt(v(d + 2), v(acc[1]), v(acc[1] + 1), tag)
        self.cvt(v(d + 3), v(acc[1] + 2), v(acc[1] + 3), tag)
        self.cvt(v(acc[1]), v(acc[2]), v(acc[2] + 1), tag)
        self.cvt(v(acc[1] + 1), v(acc[2] + 2), v(acc[2] + 3), tag)
        o4, o2 = (v(OO4[0]), v(OO2[0])) if isE else (v(OO4[t]), v(OO2[t]))
        so = '0' if isE else S_WOFF[w]
        s4 = 'buffer_store_dwordx4 %s, %s, %s, %s offen %s' % (v(d, 4), o4, S_OUT, so, self.st4)
        s2 = 'buffer_store_dwordx2 %s, %s, %s, %s offen %s' % (v(acc[1], 2), o2, S_OUT, so, self.st2)
        rdx = [S_OUT] + ([so] if so != '0' else [])
        if isE:
            self.p.vmem(['s_mov_b64 exec, %s' % S_ME, s4.strip(), s2.strip(), 's_mov_b64 exec, -1'],
                        [v(d, 4), v(acc[1], 2), o4, o2, S_ME] + rdx, [], tag, nasync=2,
                        store_data=[v(d, 4), v(acc[1], 2)], lat=800)
        else:
            self.p.vmem(s4.strip(), [v(d, 4), o4] + rdx, [], tag, store_data=[v(d, 4)], lat=800)
            self.p.vmem(s2.strip(), [v(acc[1], 2), o2] + rdx, [], tag, store_data=[v(acc[1], 2)], lat=800)

    def build(self):
        p = self.p
        self.xe_reads = []
        self.scalars()
        self.addresses()
        for u in range(5):
            self.stage_dma(u)
        b0 = p.barrier(after_done=self.xdma[0] + [self.xe_dma], tag='bx0')
        self.stamp([b0], 'bx0')
        self.mask_consts()
        self.bias_table()
        self.pass_smajor('K', 0, [b0])
        self.pass_smajor('Q', 0, [b0])
        self.x_dma(1)
        self.s_tile(0, 3, 0)
        self.s_tile(0, 0, 1)
        self.softmax(0, 3, 0)
        self.softmax(0, 0, 1)
        self.pass_smajor('V', 0, [b0])
        for u in (18, 19, 20):
            self.stage_dma(u)
        self.va('v_mov_b32 v88, 0x3f803f80', [], ['v88'])
        for i in (89, 90, 91):
            self.va('v_mov_b32 v%d, 0x3f803f80' % i, [], ['v%d' % i])
        bar = p.barrier(after_done=self.xdma[1] + self.xreads[0] + self.xe_reads + self.stage_reads, tag='b0')
        self.stamp([bar], 'b0')
        for w in range(4):
            last = (w == 3)
            if w + 2 < 4:
                if w + 2 == 3:
                    self.x_adjust()
                self.x_dma(w + 2, after=[bar])
            self.pv(w, 3, 0)
            self.pv(w, 0, 1)
            self.post(w, 3, 0, [bar])
            self.post(w, 0, 1, [bar])
            if w == 0:
                for u in range(18, 24):
                    self.stage_read(u)
                    if u + 3 < 24:
                        self.stage_dma(u + 3)
            self.s_tile(w, 1, 0)
            self.s_tile(w, 2, 1)
            if not last:
                if w + 1 == 3:
                    self.y_consts(True)
                self.kq_tile(w + 1, 0, [bar])
            self.softmax(w, 1, 0)
            self.softmax(w, 2, 1)
            if not last:
                self.kq_tile(w + 1, 1, [bar])
                self.kq_tile(w + 1, 2, [bar])
            if w == 0:
                self.out_offsets()
            if last:
                for t in range(3):
                    self.out_tile(2, t, [bar])
                self.out_adjust()
                barx = p.barrier(after_done=self.owrites[3] + self.owrites['E'], tag='bx')
                self.stamp([barx], 'bx')
            self.pv(w, 1, 0)
            self.pv(w, 2, 1)
            self.post(w, 1, 0, [bar])
            self.post(w, 2, 1, [bar])
            if not last:
                self.s_tile(w + 1, 3, 0)
                self.s_tile(w + 1, 0, 1)
                for t in range(3):
                    self.v_tile(w + 1, t, [bar])
                    if w >= 1:
                        self.out_tile(w - 1, t, [bar])
                self.softmax(w + 1, 3, 0)
                self.softmax(w + 1, 0, 1)
                deps = self.owrites[w] + self.xreads[w + 1] + (self.xdma[w + 2] if w + 2 < 4 else [])
                if w >= 1:
                    deps += self.oreads[w - 1]
                if w == 0:
                    deps += self.stage_reads
                deps += self.owrites['E']
                bar = p.barrier(after_done=deps, tag='b%d' % (w + 1))
                self.stamp([bar], 'b%d' % (w + 1))
            else:
                self.out_tile(3, 0, [barx])
                bar = p.barrier(after_done=self.owrites[3], tag='bend')
                self.stamp([bar], 'bend')
                self.out_tile(3, 1, [bar])
                self.out_tile(3, 2, [bar])
                self.out_offsets_e()
                self.out_tile('E', 3, [barx])
        return p


def make(truemax=True, sequential=False, st4='', st2='', comments=False, dbg=None):
    g = Gen(truemax=truemax, st4=st4, st2=st2, dbg=dbg)
    p = g.build()
    sch = Scheduler(p.ops, sequential=sequential)
    out = sch.run()
    verify(out)
    body = render(out, comments)
    n_mfma = sum(1 for o in p.ops if o.kind == 'mfma')
    info = dict(n_ops=len(p.ops), n_mfma=n_mfma, cycles=sch.t, stall=sch.stall,
                n_instr=len(body))
    info['stamps'] = g.stamps
    return g.entry_text(), body + g.exit_text(), info


HEADER = """; Fused Swin window attention (QKV projection, shifted-window attention, output projection), gfx950.
; Generated by gen/kernel_gen.py (hand-designed dataflow, list-scheduled).
; kernarg: x, wqkv, wo, rpb, rp_idx, attn_mask, out, debug, ws
; @launch grid=(256,1,1) block=(256,1,1) lds=%d
.amdgcn_target "amdgcn-amd-amdhsa--gfx950"
.text
.globl {k}
.p2align 8
.type {k},@function
{k}:
""".replace('{k}', KNAME) % LDS_BYTES

FOOTER = """L_end:
    s_endpgm
.section .rodata,"a"
.p2align 6
.amdhsa_kernel {k}
  .amdhsa_next_free_vgpr 512
  .amdhsa_next_free_sgpr 102
  .amdhsa_accum_offset 256
  .amdhsa_group_segment_fixed_size 0
  .amdhsa_kernarg_size 72
  .amdhsa_user_sgpr_count 2
  .amdhsa_user_sgpr_kernarg_segment_ptr 1
  .amdhsa_system_sgpr_workgroup_id_x 1
.end_amdhsa_kernel
""".replace('{k}', KNAME)


def write(path, **kw):
    entry, body, info = make(**kw)
    with open(path, 'w') as f:
        f.write(HEADER)
        f.write('\n'.join(entry) + '\n')
        f.write('\n'.join(body) + '\n')
        f.write(FOOTER)
    return info


if __name__ == '__main__':
    import argparse
    ap = argparse.ArgumentParser()
    ap.add_argument('-o', default='standalone__window_attn_swin__vision.s')
    ap.add_argument('--seq', action='store_true')
    ap.add_argument('--nomax', action='store_true')
    ap.add_argument('--comments', action='store_true')
    ap.add_argument('--st4', default='')
    ap.add_argument('--st2', default='')
    ap.add_argument('--dbg', action='store_true')
    a = ap.parse_args()
    print(write(a.o, truemax=not a.nomax, sequential=a.seq, st4=a.st4, st2=a.st2, comments=a.comments,
                dbg=(0, 133) if a.dbg else None))
```

```python
import heapq
import re

LGKM = 'lgkm'
VM = 'vm'


def regs(spec):
    if isinstance(spec, (list, tuple, set)):
        out = []
        for s in spec:
            out += regs(s)
        return out
    m = re.fullmatch(r'([vas])\[(\d+):(\d+)\]', spec)
    if m:
        return ['%s%d' % (m.group(1), i) for i in range(int(m.group(2)), int(m.group(3)) + 1)]
    return [spec]


def rng(kind, base, n):
    return '%s%d' % (kind, base) if n == 1 else '%s[%d:%d]' % (kind, base, base + n - 1)


def line_dur(t):
    if t.startswith('s_'):
        return 0
    if t.startswith('ds_read') or t.startswith('ds_bpermute') or t.startswith('ds_swizzle'):
        return 4
    if t.startswith('ds_write_b128') or t.startswith('buffer_store_dwordx4'):
        return 20
    if t.startswith('ds_write_b64') or t.startswith('buffer_store_dwordx2'):
        return 12
    if t.startswith('ds_write_b32') or t.startswith('buffer_store_dword'):
        return 8
    if t.endswith(' lds'):
        return 16
    if t.startswith('buffer_load') or t.startswith('global_load'):
        return 8
    return 4


class Op:
    __slots__ = ('text', 'kind', 'rd', 'wr', 'srcc', 'cnt', 'nasync', 'lat', 'after', 'after_done',
                 'idx', 'preds', 'succs', 'deadline', 'tag', 'order', 'issue', 'pos', 'states',
                 'store_data', 'nom', 'done_est', 'cover', 'npred', 'ready_t', 'sgpr_wr_by_valu',
                 'dur', 'earliest', 'bias', 'wanted', 'thru', 'pin')

    def __init__(self, text, kind, rd=(), wr=(), srcc=(), cnt=None, nasync=1, lat=None,
                 after=(), after_done=(), tag='', store_data=(), nom=None, earliest=0, bias=0):
        self.text = text if isinstance(text, list) else [text]
        self.kind = kind
        self.rd = regs(rd)
        self.wr = regs(wr)
        self.srcc = regs(srcc)
        self.cnt = cnt
        self.nasync = nasync if cnt else 0
        self.lat = lat
        self.after = list(after)
        self.after_done = list(after_done)
        self.tag = tag
        self.store_data = regs(store_data)
        self.nom = nom
        self.earliest = earliest
        self.bias = bias
        self.states = len(self.text)
        self.thru = 0
        self.pin = False
        self.dur = self._duration()

    def _duration(self):
        if self.kind in ('salu', 'barrier'):
            return 0
        if self.kind in ('mfma', 'trans', 'swap'):
            return 8
        if self.kind == 'valu':
            return 4
        return sum(line_dur(t) for t in self.text)


class Prog:
    def __init__(self):
        self.ops = []

    def add(self, op):
        self.ops.append(op)
        return op

    def mfma(self, d, a, b, c, tag=''):
        rd = regs(a) + regs(b)
        srcc = []
        if c != '0' and c != 0:
            srcc = regs(c)
            rd += srcc
        return self.add(Op('v_mfma_f32_16x16x32_bf16 %s, %s, %s, %s' % (d, a, b, c), 'mfma',
                           rd=rd, wr=d, srcc=srcc, tag=tag))

    def valu(self, text, rd, wr, tag='', kind='valu', **kw):
        return self.add(Op(text, kind, rd=rd, wr=wr, tag=tag, **kw))

    def salu(self, text, rd=(), wr=(), tag='', **kw):
        return self.add(Op(text, 'salu', rd=rd, wr=wr, tag=tag, **kw))

    def ds(self, text, rd, wr, tag='', lat=128, **kw):
        return self.add(Op(text, 'ds', rd=rd, wr=wr, cnt=LGKM, lat=lat, tag=tag, **kw))

    def vmem(self, text, rd, wr, tag='', lat=2000, **kw):
        return self.add(Op(text, 'vmem', rd=rd, wr=wr, cnt=VM, lat=lat, tag=tag, **kw))

    def barrier(self, after_done=(), after=(), tag=''):
        return self.add(Op('s_barrier', 'barrier', after=after, after_done=after_done, tag=tag))


VECTOR = ('mfma', 'valu', 'trans', 'swap', 'ds', 'vmem')
VALUISH = ('valu', 'trans', 'swap')


class Edge:
    __slots__ = ('p', 'lat', 'states', 'done')

    def __init__(self, p, lat, states, done):
        self.p, self.lat, self.states, self.done = p, lat, states, done


def is_sgpr(r):
    return r[0] == 's' or r in ('vcc', 'm0', 'exec', 'scc')


def raw_edge(p, c, r):
    if p.cnt:
        return (0, 0, True)
    if p.kind == 'mfma':
        if c.kind == 'mfma' and r in c.srcc and c.srcc == p.wr:
            return (16, 0, False)
        if c.kind == 'mfma' and r in c.srcc:
            return (32, 8, False)
        return (32, 8, False)
    if p.kind in VALUISH:
        if is_sgpr(r):
            if c.kind in ('vmem', 'ds'):
                return (24, 5, False)
            if c.kind in VALUISH or c.kind == 'mfma':
                return (12, 2, False)
            return (16, 3, False)
        if c.kind == 'mfma':
            return (12, 2, False)
        if c.kind == 'swap':
            return (12, 2, False)
        if c.kind in ('ds', 'vmem'):
            return (12, 0, False)
        if 'readfirstlane' in c.text[0] or 'readlane' in c.text[0]:
            return (8, 1, False)
        if p.kind == 'trans':
            return (12, 1, False)
        if p.kind == 'swap':
            return (12, 1, False)
        return (8, 0, False)
    if p.kind in ('salu', 'barrier'):
        if r == 'm0':
            return (8, 1, False)
        return (4, 0, False)
    return (4, 0, False)


def war_edge(p, c, r):
    if p.kind == 'mfma' and r in p.srcc and c.kind != 'mfma':
        return (16, 3, False)
    if p.kind == 'mfma' and r in p.srcc and c.kind == 'mfma':
        return (4, 0, False)
    if r in p.store_data:
        return (12, 2, False)
    return (4, 0, False)


def waw_edge(p, c, r):
    if p.cnt:
        return (0, 0, True)
    if p.kind == 'mfma' and c.kind != 'mfma':
        return (32, 8, False)
    if p.kind == 'mfma' and c.kind == 'mfma':
        if c.srcc == p.wr:
            return (16, 0, False)
        return (16, 0, False)
    if p.kind in VALUISH and is_sgpr(r) and c.kind == 'salu':
        return (16, 3, False)
    return (4, 0, False)


def build_deps(ops):
    last_w = {}
    readers = {}
    for i, op in enumerate(ops):
        op.idx = i
        op.preds = {}
        op.succs = []
    for op in ops:
        def add(p, e):
            if p is op:
                return
            old = op.preds.get(p.idx)
            if old is None:
                op.preds[p.idx] = Edge(p, *e)
            else:
                old.lat = max(old.lat, e[0])
                old.states = max(old.states, e[1])
                old.done = old.done or e[2]
        rd = list(op.rd)
        if op.kind in VECTOR:
            rd.append('exec')
        for r in rd:
            if r in last_w:
                add(last_w[r], raw_edge(last_w[r], op, r))
        for r in op.wr:
            if r in last_w:
                add(last_w[r], waw_edge(last_w[r], op, r))
            for p in readers.get(r, ()):
                add(p, war_edge(p, op, r))
        for p in op.after:
            add(p, (4, 0, False))
        for p in op.after_done:
            add(p, (0, 0, bool(p.cnt)))
        for r in rd:
            readers.setdefault(r, []).append(op)
        for r in op.wr:
            last_w[r] = op
            readers[r] = []
    for op in ops:
        for e in op.preds.values():
            e.p.succs.append(op)


DUR = {'mfma': 8, 'valu': 4, 'trans': 8, 'swap': 8, 'ds': 4, 'vmem': 4, 'salu': 0, 'barrier': 0}


def compute_deadlines(ops, mfma_period=16):
    k = 0
    for op in ops:
        if op.kind == 'mfma':
            op.nom = k * mfma_period
            k += 1
    horizon = k * mfma_period + 4000
    k = 0
    for op in ops:
        if op.kind == 'mfma':
            k += 1
        op.deadline = op.nom if op.kind == 'mfma' else k * mfma_period + 1500
    for op in reversed(ops):
        d = op.deadline
        for s in op.succs:
            e = s.preds[op.idx]
            lat = e.lat
            if e.done:
                lat = max(lat, op.lat or 0)
            d = min(d, s.deadline - max(lat, 4))
        op.deadline = d + op.bias
    return horizon


class Emitted:
    __slots__ = ('text', 'kind', 'op', 'time', 'free')

    def __init__(self, text, kind, op=None, time=0, free=False):
        self.text, self.kind, self.op, self.time, self.free = text, kind, op, time, free


def waitcnt_text(vm, lg):
    parts = []
    if vm is not None:
        parts.append('vmcnt(%d)' % min(vm, 63))
    if lg is not None:
        parts.append('lgkmcnt(%d)' % min(lg, 15))
    return 's_waitcnt ' + ' '.join(parts)


class Scheduler:
    def __init__(self, ops, lookahead=48, sequential=False, verbose=False, long_horizon=96):
        self.ops = ops
        self.lookahead = lookahead
        self.sequential = sequential
        self.verbose = verbose
        self.long_horizon = long_horizon
        self.out = []
        self.nstates = 0
        self.free_slots = []
        self.t = 0
        self.t_mfma = -100
        self.t_vec = 0
        self.t_valu = -100
        self.inflight = {LGKM: [], VM: []}
        self.stall = 0
        self.n_mfma = 0
        self.last_done = {LGKM: 0, VM: 0}

    def states_between(self, p):
        return self.nstates - p.pos

    def need_states(self, op):
        need = 0
        for e in op.preds.values():
            if e.states:
                need = max(need, e.states - self.states_between(e.p))
        return need

    def materialise(self, op):
        for e in op.preds.values():
            if not e.states:
                continue
            while e.states - self.states_between(e.p) > 0:
                slot = None
                for em in reversed(self.out):
                    if em.op is e.p:
                        break
                    if em.free:
                        slot = em
                        break
                if slot is None:
                    break
                slot.free = False
                slot.text = ['s_nop 0']
                slot.kind = 'nop'
                self._recount()

    def _recount(self):
        n = 0
        for em in self.out[self._base_idx:]:
            if em.op is not None:
                em.op.pos = self._base_cnt + n + (0 if em.free else self._nst(em))
            if not em.free:
                n += self._nst(em)
        self.nstates = self._base_cnt + n

    @staticmethod
    def _nst(em):
        if em.kind == 'nop':
            return sum(int(t.split()[1]) + 1 for t in em.text)
        return len(em.text)

    def _rebase(self):
        if len(self.out) - self._base_idx > 160:
            newb = len(self.out) - 64
            n = 0
            for em in self.out[self._base_idx:newb]:
                if not em.free:
                    n += self._nst(em)
            self._base_idx = newb
            self._base_cnt += n

    def avail_free(self, op):
        worst = 0
        for e in op.preds.values():
            if not e.states:
                continue
            short = e.states - self.states_between(e.p)
            if short <= 0:
                continue
            cnt = 0
            for em in reversed(self.out):
                if em.op is e.p:
                    break
                if em.free:
                    cnt += 1
            worst = max(worst, short - cnt)
        return worst

    def emit(self, text, kind, op=None, free=False):
        em = Emitted(text if isinstance(text, list) else [text], kind, op, self.t, free)
        self.out.append(em)
        if not free:
            self.nstates += self._nst(em)
        if op is not None:
            op.pos = self.nstates
        self._rebase()
        return em

    def emit_wait(self, upto):
        vm = lg = None
        t_done = self.t
        for cnt, op in upto.items():
            fl = self.inflight[cnt]
            i = fl.index(op)
            rest = fl[i + 1:]
            n = sum(o.nasync for o in rest)
            for o in fl[:i + 1]:
                o.cover = True
                t_done = max(t_done, o.done_est)
            self.inflight[cnt] = rest
            if cnt == VM:
                vm = n
            else:
                lg = n
        self.emit(waitcnt_text(vm, lg), 'wait')
        if t_done > self.t:
            self.stall += t_done - self.t
        self.t = max(self.t, t_done) + 4

    def uncovered(self, op):
        res = {}
        for e in op.preds.values():
            if e.done and e.p.cnt and not e.p.cover:
                fl = self.inflight[e.p.cnt]
                cur = res.get(e.p.cnt)
                if cur is None or fl.index(e.p) > fl.index(cur):
                    res[e.p.cnt] = e.p
        return res

    def ready_time(self, op):
        t = op.earliest
        for e in op.preds.values():
            if e.done and e.p.cnt:
                t = max(t, e.p.done_est)
            else:
                t = max(t, e.p.issue + e.lat)
        return t

    def issue_time(self, op):
        t = max(self.t, op.ready_t)
        k = op.kind
        if k == 'mfma':
            t = max(t, self.t_mfma + 16, self.t_vec)
        elif k in VALUISH:
            t = max(t, self.t_vec)
        elif k in ('ds', 'vmem'):
            t = max(t, self.t_vec, self.t_valu + 12)
        return t

    def do_issue(self, op):
        unc = self.uncovered(op)
        if unc:
            self.emit_wait(unc)
        self.materialise(op)
        short = self.need_states(op)
        if short > 0:
            self.emit(['s_nop %d' % (short - 1)], 'nop')
            self.t += 4 * short
        if op.cnt:
            cap = 15 if op.cnt == LGKM else 63
            fl = self.inflight[op.cnt]
            while sum(o.nasync for o in fl) + op.nasync > cap:
                self.emit_wait({op.cnt: fl[0]})
                fl = self.inflight[op.cnt]
        k = op.kind
        lead = 0
        if k in ('ds', 'vmem'):
            while op.text[lead].startswith('s_'):
                lead += 1
        t = self.issue_time(op)
        if lead:
            t0 = max(self.t, op.ready_t)
            t = max(t, t0 + 4 * lead)
        self.t = t
        self.emit(op.text, op.kind, op)
        op.issue = t
        n = len(op.text)
        if k == 'mfma':
            self.t_mfma = t
            self.t_vec = t + 8
            self.t = t + 4
            self.n_mfma += 1
        elif k in VALUISH:
            self.t_vec = t + op.dur
            self.t_valu = t + (4 if op.dur == 8 else 0)
            self.t = t + 4
        elif k in ('ds', 'vmem'):
            tv = t
            tt = t
            for line in op.text[lead:]:
                d = line_dur(line)
                if d:
                    tt = max(tt, tv)
                    tv = tt + d
                tt += 4
            self.t_vec = tv
            self.t = tt
        else:
            self.t = t + 4 * n
        if op.cnt:
            fl = self.inflight[op.cnt]
            prev = self.last_done[op.cnt]
            op.done_est = max(t + op.lat, prev + op.thru)
            self.last_done[op.cnt] = op.done_est
            op.cover = False
            fl.append(op)
        op.order = self.count
        self.count += 1
        for s in op.succs:
            s.npred -= 1
            if s.npred == 0:
                s.ready_t = self.ready_time(s)
                self.ready.append(s)

    def opportunistic_wait(self):
        upto = {}
        for cnt, fl in self.inflight.items():
            last = None
            for o in fl:
                if o.done_est <= self.t:
                    last = o
                else:
                    break
            if last is not None and any(o.wanted for o in fl[:fl.index(last) + 1]):
                upto[cnt] = last
        if upto:
            self.emit_wait(upto)
            return True
        return False

    def run(self):
        ops = self.ops
        build_deps(ops)
        compute_deadlines(ops)
        self._base_idx = 0
        self._base_cnt = 0
        self.count = 0
        for op in ops:
            op.npred = len(op.preds)
            op.issue = None
            op.pos = -1000
            op.cover = True
            op.done_est = 0
            op.wanted = any(x.preds[op.idx].done for x in op.succs)
        self.ready = [op for op in ops if op.npred == 0]
        for op in self.ready:
            op.ready_t = op.earliest
        if self.sequential:
            for op in ops:
                assert op.npred == 0, op.text
                self.ready.remove(op)
                self.do_issue(op)
            return self.out
        n_left = len(ops)
        for op in ops:
            if not op.pin:
                break
            assert op.npred == 0, op.text
            self.ready.remove(op)
            self.do_issue(op)
            n_left -= 1
        mf_order = [op for op in ops if op.kind == 'mfma']
        mf_ptr = 0
        LONG_H = self.long_horizon
        while n_left:
            while mf_ptr < len(mf_order) and mf_order[mf_ptr].issue is not None:
                mf_ptr += 1
            more = mf_ptr < len(mf_order)
            lim = mf_order[min(mf_ptr + self.lookahead, len(mf_order) - 1)].nom if more else 1 << 60
            now_nom = mf_order[mf_ptr].nom if more else 1 << 60
            cands = self.ready
            best_m = None
            for op in cands:
                if op.kind == 'mfma' and op.nom <= lim:
                    ti = self.earliest(op)
                    key = (max(ti, self.t_mfma + 16), op.nom)
                    if best_m is None or key < best_m[0]:
                        best_m = (key, op, ti)
            tm = best_m[2] if best_m else None
            others = [op for op in cands if op.kind != 'mfma']
            if self.t < self.t_vec:
                sc = [op for op in others if (op.kind in ('salu', 'barrier') or op.text[0].startswith('s_'))
                      and op.ready_t <= self.t and not self.uncovered(op) and self.need_states(op) <= 0]
                sc = [op for op in sc if op.kind in ('salu', 'barrier') or
                      (op.deadline <= now_nom + LONG_H and self.t_valu + 12 <= self.t_vec + 4)]
                if sc and (tm is None or len(min(sc, key=lambda o: o.deadline).text) <= 1 or
                           min(sc, key=lambda o: o.deadline).deadline <= now_nom + LONG_H or tm > self.t + 12):
                    chosen = min(sc, key=lambda o: o.deadline)
                elif self.opportunistic_wait():
                    continue
                else:
                    self.emit([], 'free', free=True)
                    self.t = min(self.t_vec, self.t + 4) if self.t_vec - self.t > 4 else self.t_vec
                    continue
            else:
                gap_start = self.t <= self.t_mfma + 8
                best = None
                for op in others:
                    ti = self.earliest(op)
                    d = op.dur if op.kind in VECTOR else 4 * len(op.text)
                    end = ti + d
                    late = op.deadline <= now_nom
                    if tm is None:
                        ok = True
                    elif end <= tm:
                        ok = True
                    elif ti > tm:
                        ok = False
                    elif d > 8 and op.kind in VECTOR:
                        ok = (gap_start or self.t > self.t_mfma + 16) and op.deadline <= now_nom + LONG_H and ti <= self.t
                        ok = ok or (op.deadline <= now_nom - 64 and ti <= self.t + 4)
                    else:
                        ok = late and ti <= self.t + 4
                    if not ok:
                        continue
                    key = (op.deadline if ti <= self.t else op.deadline + 4 * (ti - self.t), ti)
                    if best is None or key < best[0]:
                        best = (key, op, ti)
                if best is not None:
                    op, ti = best[1], best[2]
                    if ti > self.t:
                        if ti - self.t >= 4 and self.opportunistic_wait():
                            continue
                    chosen = op
                elif best_m is not None:
                    if best_m[2] - self.t >= 4 and self.opportunistic_wait():
                        continue
                    chosen = best_m[1]
                else:
                    chosen = min(cands, key=lambda o: (self.earliest(o), o.deadline))
            self.ready.remove(chosen)
            self.do_issue(chosen)
            n_left -= 1
        return self.out

    def earliest(self, op):
        ti = self.issue_time(op)
        if self.uncovered(op):
            ti = max(ti, self.t + 4)
        sh = self.avail_free(op)
        if sh > 0:
            ti = max(ti, self.t + 4 * sh)
        return ti

    def t_nom(self, mf_order, mf_ptr):
        if mf_ptr < len(mf_order):
            return mf_order[mf_ptr].nom
        return 1 << 60


def render(out, comments=False):
    lines = []
    for em in out:
        if em.free:
            continue
        for t in em.text:
            if comments and em.op is not None:
                lines.append('    %-70s ; t=%d %s' % (t, em.time, em.op.tag))
            else:
                lines.append('    ' + t)
    return lines


def verify(out):
    seq = []
    for em in out:
        if em.free:
            continue
        seq.append(em)
    pos = 0
    for em in seq:
        n = Scheduler._nst(em)
        if em.op is not None:
            em.op.pos = pos + n
            start = pos
            for e in em.op.preds.values():
                gap = start - e.p.pos
                assert e.p.pos <= start, ('order', em.op.text, e.p.text)
                assert gap >= e.states, ('states', em.op.text, e.p.text, gap, e.states)
        pos += n
    fl = {LGKM: [], VM: []}
    done = set()
    for em in seq:
        if em.kind == 'wait':
            txt = em.text[0]
            for cnt, pat in ((VM, r'vmcnt\((\d+)\)'), (LGKM, r'lgkmcnt\((\d+)\)')):
                m = re.search(pat, txt)
                if m:
                    n = int(m.group(1))
                    lst = fl[cnt]
                    while sum(o.nasync for o in lst) > n:
                        done.add(lst.pop(0).idx)
        elif em.op is not None:
            for e in em.op.preds.values():
                if e.done and e.p.cnt:
                    assert e.p.idx in done, ('uncovered', em.op.text, e.p.text)
            if em.op.cnt:
                fl[em.op.cnt].append(em.op)
    return True
```

```python
import sys
import math
from asmlib import Prog, Op, Scheduler, render, verify, rng, regs, LGKM, VM

KNAME = 'standalone__window_attn_swin__vision_kernel'

TOTAL = 224 * 224 * 384
ROWB = 224 * 384
WINB = 7 * 384
XB = (0, 18432)
BT = 36864
TS = 90112
XE = 93184
OREG = 94720
OE_OFF, OB_OFF = 0, (6144, 6144 + 18432)
SLOT = [94720 + 12288 * i for i in range(2)] + [119296 + 12288 * i for i in range(3)]
LDS_BYTES = 156160
SQRT48 = math.sqrt(48.0)
CEXP = math.log2(math.e) / SQRT48
PA, PAN, PB = 0x3EF441D2, 0xBEF4C1D2, 0x3F8041D3
NEGBIG = 0xC6EA6000


def f2u(x):
    import struct
    return struct.unpack('<I', struct.pack('<f', x))[0]


def KA(kt): return rng('v', 8 * kt, 4)
def KB(kt): return rng('v', 8 * kt + 4, 4)
def QA(qt): return rng('v', 32 + 8 * qt, 4)
def QB(qt): return rng('v', 36 + 8 * qt, 4)
def VV(td, ks): return rng('v', 64 + 8 * td + 4 * ks, 4)
ONES = 'v[88:91]'
WOV = 92
SP = (124, 140)
OX = (156, 164)
ACCP = [172 + 4 * i for i in range(7)]
ACCO = [200 + 4 * i for i in range(3)]
FR = [212 + 4 * i for i in range(6)]
XOFF = [236 + j for j in range(5)]
OO4 = [241, 242, 243]
OO2 = [244, 245, 246]
XRE, XRO, L16O, L16B, OW128, OW64, FX, NEG, SPARE = 247, 248, 249, 250, 251, 252, 253, 254, 255
WV = [88, 89, 90]
TRB = 91
WVO = OO2
TRBOA, XEB, TRBOB = 241, 242, 255


def WK(tc, s): return 0 + (tc * 6 + s) * 4
def WQ(tc, s): return 72 + (tc * 6 + s) * 4
def WVv(tc, s): return 144 + (tc * 6 + s) * 4


def WO(tc, f):
    i = tc * 6 + f
    return ('a', 216 + 4 * i) if i < 10 else ('v', WOV + 4 * (i - 10))


def areg(b, n=4): return rng('a', b, n)
def v(b, n=1): return rng('v', b, n)


S_X, S_W, S_WO, S_RPB, S_OUT = 's[16:19]', 's[20:23]', 's[24:27]', 's[28:31]', 's[32:35]'
S_H, S_WH, S_C, S_BASE = 's36', 's37', 's38', 's40'
S_TY, S_TX3 = 's39', 's41'
S_WOFF = ['0', 's42', 's43', '0']
S_XM, S_STM = 's45', 's46'
S_TMP = ['s%d' % i for i in range(47, 54)]
S_LO32 = 's[54:55]'
def S_MG(w): return 's[%d:%d]' % (56 + 2 * w, 57 + 2 * w)
def S_MN(w): return 's[%d:%d]' % (64 + 2 * w, 65 + 2 * w)
S_ME = 's[72:73]'
S_ADJ = 's74'
S_BAD = 's[76:77]'
S_T2 = ['s%d' % i for i in range(78, 90)]


STAMP = ['s3', 's92', 's93', 's94', 's95', 's96', 's97', 's98', 's99', 's100', 's101', 's75']


class Rot:
    def __init__(self, items):
        self.items, self.i = items, 0

    def next(self):
        r = self.items[self.i % len(self.items)]
        self.i += 1
        return r


class Gen:
    def __init__(self, truemax=True, st4='', st2='', dbg=None, codepf=False):
        self.p = Prog()
        self.truemax = truemax
        self.st4, self.st2 = st4, st2
        self.dbg = dbg
        self.codepf = codepf
        self.fr = Rot(FR)
        self.accp = Rot(ACCP)
        self.stmp = Rot(S_TMP)
        self.slot_last = {}
        self.xreads = {w: [] for w in range(4)}
        self.xdma = {w: [] for w in range(4)}
        self.oreads = {w: [] for w in list(range(4)) + ['E']}
        self.owrites = {w: [] for w in list(range(4)) + ['E']}
        self.stage_reads = []
        self.bar = {}
        self.stamps = ['start']

    def va(self, text, rd, wr, tag='', **kw):
        return self.p.valu(text, rd, wr, tag, **kw)

    def sa(self, text, rd=(), wr=(), tag='', **kw):
        return self.p.salu(text, rd, wr, tag, **kw)

    def div7(self, dst_y, dst_x, tk, tmp):
        self.va('v_mul_u32_u24 %s, 37, %s' % (dst_y, tk), [tk], [dst_y])
        self.va('v_lshrrev_b32 %s, 8, %s' % (dst_y, dst_y), [dst_y], [dst_y])
        self.va('v_mul_u32_u24 %s, 7, %s' % (tmp, dst_y), [dst_y], [tmp])
        self.va('v_sub_u32 %s, %s, %s' % (dst_x, tk, tmp), [tk, tmp], [dst_x])

    def pixoff(self, dst, y, x, tmp):
        self.va('v_mul_u32_u24 %s, 0x%x, %s' % (dst, ROWB, y), [y], [dst])
        self.va('v_mul_u32_u24 %s, 384, %s' % (tmp, x), [x], [tmp])
        self.va('v_add_u32 %s, %s, %s' % (dst, dst, tmp), [dst, tmp], [dst])

    def wrapy(self, dst, tmp):
        self.va('v_add_u32 %s, %s, %s' % (dst, S_BASE, dst), [dst, S_BASE], [dst])
        self.va('v_subrev_u32 %s, 0x%x, %s' % (tmp, TOTAL, dst), [dst], [tmp])
        self.va('v_min_u32 %s, %s, %s' % (dst, dst, tmp), [dst, tmp], [dst])

    def stamp(self, after, name):
        if not self.dbg:
            return
        k = len(self.stamps)
        self.stamps.append(name)
        self.sa(['s_memtime s[90:91]', 's_waitcnt lgkmcnt(0)', 's_mov_b32 %s, s90' % STAMP[k]], [], ['s90', 's91'],
                'stamp ' + name, after=after)

    def lane_ids(self, l, n, g):
        self.va('v_mbcnt_lo_u32_b32 %s, -1, 0' % l, [], [l])
        self.va('v_mbcnt_hi_u32_b32 %s, -1, %s' % (l, l), [l], [l])
        self.va('v_and_b32 %s, 15, %s' % (n, l), [l], [n])
        self.va('v_lshrrev_b32 %s, 4, %s' % (g, l), [l], [g])

    def entry_text(self):
        t = """    s_cmp_ge_u32 s2, 256
    s_cbranch_scc1 L_end
    s_load_dwordx2 s[16:17], s[0:1], 0
    s_load_dwordx2 s[20:21], s[0:1], 8
    s_load_dwordx2 s[24:25], s[0:1], 16
    s_load_dwordx2 s[28:29], s[0:1], 24
    s_load_dwordx2 s[32:33], s[0:1], 48
    s_load_dwordx2 s[14:15], s[0:1], 56
    v_lshrrev_b32 v1, 6, v0
    v_and_b32 v64, 63, v0
    v_readfirstlane_b32 s36, v1""".split('\n')
        if self.dbg:
            t += ['    s_memtime s[90:91]', '    s_waitcnt lgkmcnt(0)', '    s_mov_b32 s3, s90']
        if self.codepf:
            t += ['    s_getpc_b64 s[4:5]', 'L_pc:',
                  '    s_lshr_b32 s6, s2, 3', '    s_and_b32 s6, s6, 31', '    s_lshl_b32 s6, s6, 3',
                  '    v_and_b32 v2, 7, v0', '    v_add_u32 v2, s6, v2', '    v_lshlrev_b32 v2, 7, v2',
                  '    v_min_u32 v2, L_end-L_pc, v2',
                  '    s_mov_b32 exec_lo, 0xff', '    s_mov_b32 exec_hi, 0',
                  '    global_load_dword v3, v2, s[4:5]', '    s_mov_b64 exec, -1']
        return t

    def exit_text(self):
        if not self.dbg:
            return []
        n = len(self.stamps)
        t = ['    s_waitcnt vmcnt(0)', '    s_memtime s[90:91]', '    s_waitcnt lgkmcnt(0)',
             '    s_cmp_eq_u32 s36, 0', '    s_cbranch_scc0 L_end',
             '    s_cmp_eq_u32 s2, %d' % self.dbg[0], '    s_cbranch_scc1 L_dbg0',
             '    s_cmp_eq_u32 s2, %d' % self.dbg[1], '    s_cbranch_scc0 L_end',
             '    s_add_u32 s14, s14, 64', '    s_addc_u32 s15, s15, 0', 'L_dbg0:',
             '    v_mov_b32 v0, 0']
        for k in range(1, n):
            t += ['    s_sub_u32 s4, %s, s3' % STAMP[k], '    v_mov_b32 v1, s4', '    global_store_dword v0, v1, s[14:15] offset:%d' % (4 * k)]
        t += ['    s_sub_u32 s4, s90, s3', '    v_mov_b32 v1, s4', '    global_store_dword v0, v1, s[14:15] offset:%d' % (4 * n)]
        return t

    def early(self):
        sa, va = self.sa, self.va
        L = 'v64'
        self.L, self.N, self.G = L, 'v65', 'v66'
        n0 = len(self.p.ops)
        for srd, size in ((16, TOTAL), (20, 221184), (24, 73728), (28, 1352), (32, TOTAL)):
            sa(['s_mov_b32 s%d, 0x%x' % (srd + 2, size), 's_mov_b32 s%d, 0x20000' % (srd + 3)], [],
               ['s%d' % (srd + 2), 's%d' % (srd + 3)])
        sa('s_lshr_b32 s37, s2, 3', ['s2'], [S_WH])
        sa(['s_mul_i32 s40, s37, %d' % (7 * ROWB), 's_and_b32 s47, s2, 7', 's_mul_i32 s48, s47, %d' % (4 * WINB),
            's_add_u32 s40, s40, s48', 's_add_u32 s40, s40, %d' % (3 * ROWB + 3 * 384)], ['s2', S_WH], [S_BASE, 's47', 's48'])
        sa(['s_mul_i32 s52, s36, 288', 's_mul_i32 s45, s36, 4608', 's_mul_i32 s46, s36, 3072'], [S_H], ['s52', S_XM, S_STM])
        sa(['s_mov_b32 s78, -24', 's_mov_b32 s79, 384', 's_mov_b32 s80, %d' % (ROWB - WINB)], [], ['s78', 's79', 's80'])
        P = ['v%d' % (96 + i) for i in range(5)]
        TK = ['v%d' % (101 + i) for i in range(5)]
        Y = ['v%d' % (106 + i) for i in range(5)]
        A = ['v%d' % (111 + i) for i in range(5)]
        self.xt = (TK, Y)
        D = [v(XOFF[j]) for j in range(5)]
        va('v_add_u32 %s, s52, %s' % (P[0], L), ['s52', L], [P[0]])
        for j in range(1, 5):
            va('v_add_u32 %s, %d, %s' % (P[j], 64 * j, P[0]), [P[0]], [P[j]])
        for j in range(5):
            va('v_mul_u32_u24 %s, 2731, %s' % (TK[j], P[j]), [P[j]], [TK[j]])
        for j in range(5):
            va('v_lshrrev_b32 %s, 16, %s' % (TK[j], TK[j]), [TK[j]], [TK[j]])
        for j in range(5):
            va('v_mad_i32_i24 %s, %s, s78, %s' % (P[j], TK[j], P[j]), [TK[j], 's78', P[j]], [P[j]])
        for j in range(5):
            va('v_bfe_u32 %s, %s, 1, 3' % (A[j], TK[j]), [TK[j]], [A[j]])
        for j in range(5):
            va('v_mul_u32_u24 %s, 37, %s' % (Y[j], TK[j]), [TK[j]], [Y[j]])
        for j in range(5):
            va('v_xor_b32 %s, %s, %s' % (P[j], P[j], A[j]), [P[j], A[j]], [P[j]])
        for j in range(5):
            va('v_lshrrev_b32 %s, 8, %s' % (Y[j], Y[j]), [Y[j]], [Y[j]])
        for j in range(5):
            va('v_lshl_add_u32 %s, %s, 4, s40' % (D[j], P[j]), [P[j], S_BASE], [D[j]])
        for j in range(5):
            va('v_mad_u32_u24 %s, %s, s79, %s' % (D[j], TK[j], D[j]), [TK[j], 's79', D[j]], [D[j]])
        for j in range(5):
            va('v_mad_u32_u24 %s, %s, s80, %s' % (D[j], Y[j], D[j]), [Y[j], 's80', D[j]], [D[j]])
        for j in range(5):
            va('v_subrev_u32 %s, 0x%x, %s' % (A[j], TOTAL, D[j]), [D[j]], [A[j]])
        for j in range(5):
            va('v_min_u32 %s, %s, %s' % (D[j], D[j], A[j]), [D[j], A[j]], [D[j]])
        T0, T1, T2 = 'v116', 'v117', 'v118'
        va('v_lshlrev_b32 %s, 7, %s' % (T0, L), [L], [T0])
        sa('s_lshl_b32 s49, s36, 1', [S_H], ['s49'])
        va('v_lshl_add_u32 %s, %s, 3, s49' % (T1, L), [L, 's49'], [T1])
        va('v_lshlrev_b32 %s, 4, %s' % (T2, L), [L], [T2])
        self.L16 = T2
        sa(['s_mul_i32 s50, s37, 54', 's_mul_i32 s51, s36, 14', 's_add_u32 s50, s50, s51', 's_lshl_b32 s50, s50, 7',
            's_mul_i32 s51, s37, 18', 's_mul_i32 s53, s36, 5', 's_add_u32 s51, s51, s53', 's_lshl_b32 s51, s51, 7'],
           [S_WH, S_H], ['s50', 's51', 's53'])
        sa(['s_cmp_eq_u32 s37, 31', 's_cselect_b32 s39, 1, 0', 's_cmp_eq_u32 s47, 7', 's_cselect_b32 s41, 1, 0',
            's_mul_i32 s74, s41, %d' % ROWB], [S_WH, 's47'], [S_TY, S_TX3, S_ADJ])
        sa(['s_mul_i32 s81, s36, %d' % WINB, 's_add_u32 s81, s81, s40', 's_add_u32 s81, s81, %d' % (6 * ROWB + 6 * 384),
            's_mul_i32 s82, s39, %d' % TOTAL, 's_sub_u32 s81, s81, s82',
            's_cmp_eq_u32 s36, 3', 's_cselect_b32 s82, s74, 0', 's_sub_u32 s81, s81, s82',
            's_mul_i32 s82, s36, 384', 's_add_u32 s82, s82, %d' % XE],
           [S_H, S_BASE, S_TY, S_ADJ], ['s81', 's82'])
        sa(['s_mov_b32 s54, -1', 's_mov_b32 s55, 0'], [], [S_LO32])
        W0 = ['v%d' % (119 + i) for i in range(3)]
        sa(['s_mul_i32 s83, s36, 96', 's_mov_b32 s84, 1056'], [S_H], ['s83', 's84'])
        for j in range(3):
            va('v_add_u32 %s, %d, %s' % (W0[j], 64 * j, L), [L], [W0[j]])
        for j in range(3):
            va('v_lshl_add_u32 %s, %s, 4, s83' % (v(WV[j]), W0[j]), [W0[j], 's83'], [v(WV[j])])
        for j in range(3):
            va('v_mul_u32_u24 %s, 43691, %s' % (W0[j], W0[j]), [W0[j]], [W0[j]])
        for j in range(3):
            va('v_lshrrev_b32 %s, 18, %s' % (W0[j], W0[j]), [W0[j]], [W0[j]])
        for j in range(3):
            va('v_mad_u32_u24 %s, %s, s84, %s' % (v(WV[j]), W0[j], v(WV[j])), [W0[j], 's84', v(WV[j])], [v(WV[j])])
        self.W0 = W0
        sa('s_waitcnt lgkmcnt(0)', [], ['s[16:17]', 's[20:21]', 's[24:25]', 's[28:29]', 's[32:33]', 's[14:15]'], earliest=450)
        self.p.vmem(['s_mov_b32 exec_lo, 0x3fff', 's_mov_b32 exec_hi, 0',
                     'buffer_load_dword v122, %s, %s, s50 offen' % (T0, S_W),
                     's_mov_b32 exec_lo, 0x1f',
                     'buffer_load_dword v123, %s, %s, s51 offen' % (T0, S_WO), 's_mov_b64 exec, -1'],
                    [T0, S_W, S_WO, 's50', 's51'], ['v122', 'v123'], 'pf W', lat=1500, nasync=2)
        self.rpb = ['v80', 'v81', 'v82']
        for j in range(3):
            self.p.vmem('buffer_load_ushort %s, %s, %s, 0 offen offset:%d' % (self.rpb[j], T1, S_RPB, 512 * j),
                        [T1, S_RPB], [self.rpb[j]], 'rpb', lat=1700)
        self.x_dma(0)
        sa('s_mov_b32 m0, s82', ['s82'], ['m0'])
        self.xe_dma = self.p.vmem(['s_mov_b32 exec_lo, 0xffffff', 's_mov_b32 exec_hi, 0',
                                   'buffer_load_dwordx4 %s, %s, s81 offen lds' % (T2, S_X),
                                   's_mov_b64 exec, -1'],
                                  [T2, S_X, 's81', 'm0'], [], 'xE dma', lat=1800)
        for u in range(5):
            self.stage_dma(u)
        for op in self.p.ops[n0:]:
            op.pin = True

    def scalars(self):
        sa = self.sa
        sa('s_mov_b32 s38, 0x%08x' % f2u(CEXP), [], [S_C])
        for w in (1, 2):
            sa('s_mov_b32 %s, %d' % (S_WOFF[w], w * WINB), [], [S_WOFF[w]])
        for w in range(4):
            m = 0xFFFF << (16 * w)
            sa(['s_mov_b32 s%d, 0x%x' % (56 + 2 * w, m & 0xFFFFFFFF), 's_mov_b32 s%d, 0x%x' % (57 + 2 * w, m >> 32)], [], [S_MG(w)])
            m = 0x000F000F << (4 * w)
            sa(['s_mov_b32 s%d, 0x%x' % (64 + 2 * w, m), 's_mov_b32 s%d, 0x%x' % (65 + 2 * w, m)], [], [S_MN(w)])
        sa(['s_mov_b32 s72, 0x11111111', 's_mov_b32 s73, 0x11111111'], [], [S_ME])
        sa(['s_mov_b32 s76, 0', 's_mov_b32 s77, 0'], [], [S_BAD])

    def addresses(self):
        va = self.va
        L, N, G = self.L, self.N, self.G
        va('v_and_b32 %s, 15, %s' % (N, L), [L], [N])
        va('v_lshrrev_b32 %s, 4, %s' % (G, L), [L], [G])
        P, TK, RM, Y, X_, A, B = ['v%d' % i for i in range(73, 80)]
        TKs, Ys = self.xt
        va('v_mov_b32 %s, 0' % v(FX), [], [v(FX)])
        self.sa('s_mov_b32 s85, -7', [], ['s85'])
        for j in range(5):
            va('v_mad_i32_i24 %s, %s, s85, %s' % (TKs[j], Ys[j], TKs[j]), [Ys[j], 's85', TKs[j]], [TKs[j]])
            va('v_add_u32 %s, 4, %s' % (TKs[j], TKs[j]), [TKs[j]], [TKs[j]])
            va('v_lshrrev_b32 %s, 3, %s' % (TKs[j], TKs[j]), [TKs[j]], [TKs[j]])
            va('v_lshl_or_b32 %s, %s, %d, %s' % (v(FX), TKs[j], j, v(FX)), [TKs[j], v(FX)], [v(FX)])
        va('v_mul_u32_u24 %s, 384, %s' % (A, N), [N], [A])
        va('v_bfe_u32 %s, %s, 1, 3' % (B, N), [N], [B])
        va('v_xor_b32 %s, %s, %s' % (B, B, G), [B, G], [B])
        va('v_lshl_add_u32 %s, %s, 4, %s' % (v(XRE), B, A), [A, B], [v(XRE)])
        va('v_xor_b32 %s, 64, %s' % (v(XRO), v(XRE)), [v(XRE)], [v(XRO)])
        A16 = self.L16
        va('v_add_u32 %s, 0x%x, %s' % (v(L16O), OREG, A16), [A16], [v(L16O)])
        self.sa(['s_mul_i32 s53, s36, 13312', 's_add_u32 s53, s53, %d' % BT], [S_H], ['s53'])
        va('v_add_u32 %s, s53, %s' % (v(L16B), A16), ['s53', A16], [v(L16B)])
        self.sa('s_lshl_b32 s78, s36, 10', [S_H], ['s78'])
        va('v_add_u32 %s, s78, %s' % (v(OW128), v(L16O)), ['s78', v(L16O)], [v(OW128)])
        self.sa(['s_lshr_b32 s79, s36, 1', 's_lshl_b32 s79, s79, 10', 's_and_b32 s80, s36, 1', 's_lshl_b32 s80, s80, 3',
                 's_add_u32 s79, s79, s80', 's_add_u32 s79, s79, 4096'], [S_H], ['s79', 's80'])
        va('v_add_u32 %s, s79, %s' % (v(OW64), v(L16O)), ['s79', v(L16O)], [v(OW64)])
        va('v_lshrrev_b32 %s, 2, %s' % (A, N), [N], [A])
        va('v_mul_u32_u24 %s, 384, %s' % (Y, A), [A], [Y])
        va('v_lshl_add_u32 %s, %s, 4, %s' % (Y, G, Y), [G, Y], [Y])
        va('v_add_u32 %s, 0x%x, %s' % (v(XEB), XE, Y), [Y], [v(XEB)])
        va('v_mov_b32 %s, 0x%x' % (v(NEG), NEGBIG), [], [v(NEG)])
        self.sa('s_add_u32 s84, s46, %d' % SLOT[0], [S_STM], ['s84'])
        va('v_and_b32 %s, 3, %s' % (B, N), [N], [B])
        va('v_lshl_add_u32 %s, %s, 3, %s' % (Y, G, A), [G, A], [Y])
        va('v_mul_u32_u24 %s, 96, %s' % (Y, Y), [Y], [Y])
        va('v_lshl_add_u32 %s, %s, 3, %s' % (Y, B, Y), [B, Y], [Y])
        va('v_add_u32 %s, s84, %s' % (v(TRB), Y), ['s84', Y], [v(TRB)])
        va('v_lshl_add_u32 %s, %s, 2, %s' % (Y, G, A), [G, A], [Y])
        va('v_mul_u32_u24 %s, 96, %s' % (Y, Y), [Y], [Y])
        va('v_add_u32 %s, s84, %s' % (Y, Y), ['s84', Y], [Y])
        va('v_lshl_add_u32 %s, %s, 4, %s' % (v(TRBOA), B, Y), [B, Y], [v(TRBOA)])
        va('v_lshl_add_u32 %s, %s, 3, %s' % (Y, B, Y), [B, Y], [Y])
        va('v_add_u32 %s, 64, %s' % (v(TRBOB), Y), [Y], [v(TRBOB)])
        self.sa(['s_lshl_b32 s82, s36, 6', 's_lshl_b32 s83, s36, 5', 's_add_u32 s83, s83, 192'], [S_H], ['s82', 's83'])
        for j in range(3):
            RHO = self.W0[j]
            d = v(WVO[j])
            va('v_add_u32 %s, %d, %s' % (P, 64 * j, L), [L], [P])
            va('v_mul_u32_u24 %s, 6, %s' % (A, RHO), [RHO], [A])
            va('v_sub_u32 %s, %s, %s' % (RM, P, A), [P, A], [RM])
            va('v_cmp_gt_u32 vcc, 4, %s' % RM, [RM], ['vcc'])
            va('v_mov_b32 %s, s83' % A, ['s83'], [A])
            va('v_mov_b32 %s, s82' % B, ['s82'], [B])
            va('v_cndmask_b32 %s, %s, %s, vcc' % (A, A, B), [A, B, 'vcc'], [A])
            va('v_lshl_add_u32 %s, %s, 4, %s' % (A, RM, A), [RM, A], [A])
            va('v_mul_u32_u24 %s, 384, %s' % (d, RHO), [RHO], [d])
            va('v_add_u32 %s, %s, %s' % (d, d, A), [d, A], [d])

    def x_dma(self, w, after=()):
        ops = []
        for j in range(5):
            self.sa('s_add_u32 m0, s45, %d' % (XB[w & 1] + 1024 * j), [S_XM], ['m0'], after=after)
            ld = 'buffer_load_dwordx4 %s, %s, %s offen lds' % (v(XOFF[j]), S_X, S_WOFF[w])
            rd = [v(XOFF[j]), S_X, 'm0'] + ([S_WOFF[w]] if S_WOFF[w] != '0' else [])
            if j < 4:
                ops.append(self.p.vmem(ld, rd, [], 'x dma w%d' % w, lat=2500, after=after))
            else:
                ops.append(self.p.vmem(['s_mov_b64 exec, %s' % S_LO32, ld, 's_mov_b64 exec, -1'],
                                       rd + [S_LO32], [], 'x dma w%d' % w, lat=2500, after=after))
        self.xdma[w] = ops

    def x_adjust(self):
        t = v(FR[5])
        for j in range(5):
            self.va('v_bfe_u32 %s, %s, %d, 1' % (t, v(FX), j), [v(FX)], [t], 'xadj')
            self.va('v_mul_u32_u24 %s, s74, %s' % (t, t), [S_ADJ, t], [t], 'xadj')
            self.va('v_sub_u32 %s, %d, %s' % (t, 3 * WINB, t), [t], [t], 'xadj')
            self.va('v_add_u32 %s, %s, %s' % (v(XOFF[j]), v(XOFF[j]), t), [v(XOFF[j]), t], [v(XOFF[j])], 'xadj')

    def mask_consts(self):
        va = self.va
        L, N, G = self.L, self.N, self.G
        TK, Y, X_, A, B, C = 'v67', 'v68', 'v69', 'v70', 'v71', 'v72'
        self.sa('s_mov_b32 s85, 0x%x' % PA, [], ['s85'])
        self.sa('s_mov_b32 s86, 0x%x' % PB, [], ['s86'])
        va('v_cmp_eq_u32 vcc, 0, %s' % G, [G], ['vcc'])
        va('v_mov_b32 %s, 0x%x' % (C, PAN), [], [C])
        for kt in range(4):
            va('v_cndmask_b32 v%d, 0, %s, vcc' % (8 * kt + 7, C), [C, 'vcc'], ['v%d' % (8 * kt + 7)])
        for kt in range(4):
            if kt < 3:
                va('v_add_u32 %s, %d, %s' % (TK, 16 * kt, N), [N], [TK])
                self.div7(Y, X_, TK, A)
                va('v_add_u32 %s, 4, %s' % (X_, X_), [X_], [X_])
                va('v_lshrrev_b32 %s, 3, %s' % (X_, X_), [X_], [X_])
                va('v_add_u32 %s, 4, %s' % (Y, Y), [Y], [Y])
                va('v_lshrrev_b32 %s, 3, %s' % (Y, Y), [Y], [Y])
                va('v_lshl_add_u32 %s, %s, 1, %s' % (A, Y, X_), [Y, X_], [A])
                va('v_cmp_eq_u32 vcc, %s, %s' % (A, G), [A, G], ['vcc'])
                va('v_lshrrev_b32 %s, 1, %s' % (B, G), [G], [B])
                va('v_xor_b32 %s, %s, %s' % (B, B, Y), [B, Y], [B])
                va('v_xor_b32 %s, 1, %s' % (B, B), [B], [B])
                va('v_lshl_or_b32 %s, %s, %d, %s' % (v(FX), B, 8 + 2 * kt, v(FX)), [B, v(FX)], [v(FX)])
                va('v_and_b32 %s, 1, %s' % (B, G), [G], [B])
                va('v_xor_b32 %s, %s, %s' % (B, B, X_), [B, X_], [B])
                va('v_xor_b32 %s, 1, %s' % (B, B), [B], [B])
                va('v_lshl_or_b32 %s, %s, %d, %s' % (v(FX), B, 9 + 2 * kt, v(FX)), [B, v(FX)], [v(FX)])
                va('v_lshl_or_b32 %s, %s, %d, %s' % (v(FX), X_, 16 + kt, v(FX)), [X_, v(FX)], [v(FX)])
            else:
                va('v_cmp_eq_u32 vcc, 3, %s' % G, [G], ['vcc'])
            va('v_mov_b32 %s, s85' % B, ['s85'], [B])
            va('v_cndmask_b32 v%d, 0, %s, vcc' % (8 * kt + 6, B), [B, 'vcc'], ['v%d' % (8 * kt + 6)])
        self.y_consts(False)
        A, B, C = 'v70', 'v71', 'v72'
        va('v_lshrrev_b32 %s, 2, %s' % (A, N), [N], [A])
        va('v_cmp_eq_u32 vcc, 3, %s' % A, [A], ['vcc'])
        va('v_mov_b32 %s, s41' % B, [S_TX3], [B])
        va('v_cndmask_b32 %s, 0, %s, vcc' % (A, B), [B, 'vcc'], [A])
        va('v_or_b32 %s, s39, %s' % (C, A), [S_TY, A], [C])
        self.sa('s_xor_b32 s87, s39, 1', [S_TY], ['s87'])
        va('v_lshrrev_b32 %s, 1, %s' % (B, G), [G], [B])
        va('v_or_b32 %s, s87, %s' % (B, B), ['s87', B], [B])
        va('v_and_b32 %s, %s, %s' % (B, B, C), [B, C], [B])
        va('v_xor_b32 %s, 1, %s' % (A, A), [A], [A])
        va('v_and_b32 %s, 1, %s' % (Y, G), [G], [Y])
        va('v_or_b32 %s, %s, %s' % (A, A, Y), [A, Y], [A])
        va('v_and_b32 %s, %s, %s' % (B, B, A), [B, A], [B])
        va('v_sub_u32 %s, 0, %s' % (B, B), [B], [B])
        va('v_and_b32 v62, s86, %s' % B, ['s86', B], ['v62'])
        va('v_cmp_eq_u32 vcc, 0, %s' % G, [G], ['vcc'])
        va('v_cndmask_b32 %s, 0, %s, vcc' % (C, C), [C, 'vcc'], [C])
        va('v_sub_u32 %s, 0, %s' % (C, C), [C], [C])
        va('v_and_b32 v63, s86, %s' % C, ['s86', C], ['v63'])

    def y_consts(self, last):
        va = self.va
        if last:
            A, B, G = v(FR[5]), v(FR[5] + 1), v(FR[5] + 2)
            va('v_mbcnt_lo_u32_b32 %s, -1, 0' % G, [], [G], 'yadj')
            va('v_mbcnt_hi_u32_b32 %s, -1, %s' % (G, G), [G], [G], 'yadj')
            va('v_lshrrev_b32 %s, 4, %s' % (G, G), [G], [G], 'yadj')
            self.sa(['s_xor_b32 s88, s41, 1', 's_or_b32 s89, s39, s41'], [S_TY, S_TX3], ['s88', 's89'], 'yadj')
            ntx, anym = 's88', 's89'
        else:
            A, B, G = 'v70', 'v71', self.G
            self.sa(['s_mov_b32 s88, 1', 's_mov_b32 s89, s39'], [S_TY], ['s88', 's89'])
            ntx, anym = 's88', 's89'
        self.sa('s_xor_b32 s87, s39, 1', [S_TY], ['s87'])
        for qt in range(3):
            va('v_bfe_u32 %s, %s, %d, 1' % (A, v(FX), 8 + 2 * qt), [v(FX)], [A], 'y')
            va('v_or_b32 %s, s87, %s' % (A, A), ['s87', A], [A], 'y')
            va('v_bfe_u32 %s, %s, %d, 1' % (B, v(FX), 9 + 2 * qt), [v(FX)], [B], 'y')
            va('v_or_b32 %s, %s, %s' % (B, ntx, B), [ntx, B], [B], 'y')
            va('v_and_b32 %s, %s, %s' % (A, A, B), [A, B], [A], 'y')
            va('v_and_b32 %s, %s, %s' % (A, anym, A), [anym, A], [A], 'y')
            va('v_sub_u32 %s, 0, %s' % (A, A), [A], [A], 'y')
            va('v_and_b32 v%d, s86, %s' % (32 + 8 * qt + 6, A), ['s86', A], ['v%d' % (32 + 8 * qt + 6)], 'y')
        va('v_cmp_eq_u32 vcc, 0, %s' % G, [G], ['vcc'], 'y')
        va('v_mov_b32 %s, %s' % (A, anym), [anym], [A], 'y')
        va('v_cndmask_b32 %s, 0, %s, vcc' % (A, A), [A, 'vcc'], [A], 'y')
        va('v_sub_u32 %s, 0, %s' % (A, A), [A], [A], 'y')
        for qt in range(3):
            va('v_and_b32 v%d, s86, %s' % (32 + 8 * qt + 7, A), ['s86', A], ['v%d' % (32 + 8 * qt + 7)], 'y')

    def bias_table(self):
        va, ds = self.va, self.p.ds
        L, N, G = self.L, self.N, self.G
        A, B, TK = 'v70', 'v71', 'v72'
        s0 = SP[0]
        AQ = ['v%d' % (s0 + i) for i in range(4)]
        AK = ['v%d' % (s0 + 4 + i) for i in range(12)]
        GD = [s0 + 16, s0 + 20, s0 + 24]
        AD = ['v%d' % (s0 + 28 + i) for i in range(4)]
        self.sa(['s_mul_i32 s75, s36, 768', 's_add_u32 s75, s75, %d' % TS], [S_H], ['s75'])
        va('v_lshlrev_b32 %s, 2, %s' % (A, L), [L], [A])
        va('v_add_u32 %s, s75, %s' % (A, A), ['s75', A], [A])
        wr = []
        for j in range(3):
            r = self.rpb[j]
            va('v_lshlrev_b32 %s, 16, %s' % (r, r), [r], [r])
            va('v_mul_f32 %s, 0x%08x, %s' % (r, f2u(SQRT48), r), [r], [r])
            wr.append(ds('ds_write_b32 %s, %s offset:%d' % (A, r, 256 * j), [A, r], [], 'T small'))

        def a_of(dst, tk):
            va('v_mul_u32_u24 %s, 37, %s' % (dst, tk), [tk], [dst])
            va('v_lshrrev_b32 %s, 8, %s' % (dst, dst), [dst], [dst])
            va('v_mul_u32_u24 %s, 6, %s' % (dst, dst), [dst], [dst])
            va('v_add_lshl_u32 %s, %s, %s, 2' % (dst, dst, tk), [dst, tk], [dst])
        for qt in range(3):
            va('v_add_u32 %s, %d, %s' % (TK, 16 * qt, N), [N], [TK])
            a_of(AQ[qt], TK)
            va('v_add_u32 %s, s75, %s' % (AQ[qt], AQ[qt]), ['s75', AQ[qt]], [AQ[qt]])
        va('v_mov_b32 %s, s75' % AQ[3], ['s75'], [AQ[3]])
        va('v_add_u32 %s, 336, %s' % (AQ[3], AQ[3]), [AQ[3]], [AQ[3]])
        for kt in range(3):
            for r in range(4):
                va('v_lshl_add_u32 %s, %s, 2, %d' % (TK, G, 16 * kt + r), [G], [TK])
                a_of(AK[4 * kt + r], TK)
        self.bt_writes = []
        gd = Rot(GD)
        ad = Rot(AD)
        for qt in range(4):
            for kt in range(3):
                d = gd.next()
                for r in range(4):
                    a = ad.next()
                    va('v_sub_u32 %s, %s, %s' % (a, AQ[qt], AK[4 * kt + r]), [AQ[qt], AK[4 * kt + r]], [a])
                    ds('ds_read_b32 %s, %s offset:336' % (v(d + r), a), [a], [v(d + r)], 'gather', after=wr)
                self.bt_writes.append(ds('ds_write_b128 %s, %s offset:%d' % (v(L16B), v(d, 4), (qt * 3 + kt) * 1024),
                                         [v(L16B), v(d, 4)], [], 'BT'))
        d = gd.next()
        for qt in range(4):
            ds('ds_read_b32 %s, %s' % (v(d + qt), AQ[qt]), [AQ[qt]], [v(d + qt)], 'gatherE', after=wr)
        self.bt_writes.append(ds('ds_write_b128 %s, %s offset:%d' % (v(L16B), v(d, 4), 12 * 1024),
                                 [v(L16B), v(d, 4)], [], 'BT'))

    def stage_dma(self, u):
        slot = u % 5 if u < 18 else (3, 4, 2)[(u - 18) % 3]
        prev = self.slot_last.get(slot, [])
        ops = []
        st = self.stmp.next()
        if u < 18:
            cb = (384, 0, 768)[u // 6]
            self.sa('s_mov_b32 %s, %d' % (st, (u % 6) * 32 * 1152 + cb), [], [st])
            srd, offs = S_W, WV
        else:
            self.sa('s_mov_b32 %s, %d' % (st, (u - 18) * 32 * 384), [], [st])
            srd, offs = S_WO, WVO
        for j in range(3):
            self.sa('s_add_u32 m0, s46, %d' % (SLOT[slot] + 1024 * j), [S_STM], ['m0'])
            ops.append(self.p.vmem('buffer_load_dwordx4 %s, %s, %s offen lds' % (v(offs[j]), srd, st),
                                   [v(offs[j]), srd, st, 'm0'], [], 'stage dma u%d' % u,
                                   lat=self.stage_lat(u, j), after_done=prev))
            ops[-1].thru = 85
        self.stage_ops = getattr(self, 'stage_ops', {})
        self.stage_ops[u] = (slot, ops)

    def stage_lat(self, u, j):
        return 1600 if u < 5 else 900

    def stage_read(self, u):
        slot, dmas = self.stage_ops[u]
        base = SLOT[slot] - SLOT[0]
        reads = []
        if u < 18:
            s = u % 6
            fn = (WK, WQ, WVv)[u // 6]
            for tc in range(3):
                for hf in range(2):
                    d = areg(fn(tc, s) + 2 * hf, 2)
                    reads.append(self.p.ds('ds_read_b64_tr_b16 %s, %s offset:%d' % (d, v(TRB), base + 384 * hf + 32 * tc),
                                           [v(TRB)], [d], 'tr u%d' % u, after_done=dmas))
        else:
            up = u - 18
            rb = {}
            for f in range(4):
                rb[(f, 0)], rb[(f, 1)] = 48 * f, 48 * f + 16
            rb[(4, 0)], rb[(4, 1)], rb[(5, 0)], rb[(5, 1)] = 32, 80, 128, 176
            for (f, hf), r0 in sorted(rb.items(), key=lambda kv: kv[1]):
                if r0 >> 5 != up:
                    continue
                for tc in range(3):
                    k, b = WO(tc, f)
                    d = rng(k, b + 2 * hf, 2)
                    a, off = (v(TRBOA), 8 * tc) if tc < 2 else (v(TRBOB), 0)
                    reads.append(self.p.ds('ds_read_b64_tr_b16 %s, %s offset:%d' % (d, a, base + 96 * (r0 & 16) + off),
                                           [a], [d], 'tr u%d' % u, after_done=dmas))
        self.slot_last[slot] = reads
        self.stage_reads += reads
        return reads

    def xfrag(self, w, t, s, after):
        f = self.fr.next()
        if t == 3:
            op = self.p.ds('ds_read_b128 %s, %s offset:%d' % (v(f, 4), v(XEB), 64 * s), [v(XEB)], [v(f, 4)],
                           'xE s%d' % s, after=after)
            self.xe_reads.append(op)
        else:
            base = v(XRO) if s & 1 else v(XRE)
            op = self.p.ds('ds_read_b128 %s, %s offset:%d' % (v(f, 4), base, XB[w & 1] + t * 6144 + (s >> 1) * 128),
                           [base], [v(f, 4)], 'x w%d t%d s%d' % (w, t, s), after=after)
            self.xreads[w].append(op)
        return v(f, 4)

    def cvt(self, dst, a, b, tag=''):
        return self.va('v_cvt_pk_bf16_f32 %s, %s, %s' % (dst, a, b), [x for x in (a, b) if x[0] == 'v'], [dst], tag)

    def cvt_kq(self, base, tc, acc, tag):
        d = base + (2 * tc if tc < 2 else 4)
        self.cvt(v(d), v(acc), v(acc + 1), tag)
        self.cvt(v(d + 1), v(acc + 2), v(acc + 3), tag)

    def cvt_v(self, t, td, acc, tag):
        d = 64 + 8 * td + 4 * (t >> 1) + 2 * (t & 1)
        self.cvt(v(d), v(acc), v(acc + 1), tag)
        self.cvt(v(d + 1), v(acc + 2), v(acc + 3), tag)

    def pass_smajor(self, mat, w, after):
        u0 = {'K': 0, 'Q': 6, 'V': 12}[mat]
        fn = {'K': WK, 'Q': WQ, 'V': WVv}[mat]
        pool = ACCP + ACCO + [OX[0], OX[0] + 4]
        acc = {(t, tc): pool[3 * t + tc] for t in range(4) for tc in range(3)}
        for s in range(6):
            u = u0 + s
            self.stage_read(u)
            nxt = u + 5
            if nxt < 18:
                self.stage_dma(nxt)
            for t in (3, 0, 1, 2):
                f = self.xfrag(w, t, s, after)
                for tc in range(3):
                    a = v(acc[(t, tc)], 4)
                    wreg = areg(fn(tc, s))
                    c = a if s else '0'
                    if mat == 'V':
                        self.p.mfma(a, f, wreg, c, '%s p t%d s%d' % (mat, t, s))
                    else:
                        self.p.mfma(a, wreg, f, c, '%s p t%d s%d' % (mat, t, s))
        for t in (3, 0, 1, 2):
            for tc in range(3):
                if mat == 'K':
                    self.cvt_kq(8 * t, tc, acc[(t, tc)], 'cvtK')
                elif mat == 'Q':
                    self.cvt_kq(32 + 8 * t, tc, acc[(t, tc)], 'cvtQ')
                else:
                    self.cvt_v(t, tc, acc[(t, tc)], 'cvtV')

    def kq_tile(self, w, t, after):
        acc = [self.accp.next() for _ in range(6)]
        for s in range(6):
            f = self.xfrag(w, t, s, after)
            for i in range(6):
                tc = i % 3
                a = v(acc[i], 4)
                wreg = areg((WK if i < 3 else WQ)(tc, s))
                self.p.mfma(a, wreg, f, a if s else '0', 'KQ w%d t%d s%d' % (w, t, s))
        for i in range(6):
            self.cvt_kq((8 * t) if i < 3 else (32 + 8 * t), i % 3, acc[i], 'cvtKQ w%d t%d' % (w, t))

    def v_tile(self, w, t, after):
        acc = [self.accp.next() for _ in range(3)]
        for s in range(6):
            f = self.xfrag(w, t, s, after)
            for td in range(3):
                a = v(acc[td], 4)
                self.p.mfma(a, f, areg(WVv(td, s)), a if s else '0', 'V w%d t%d s%d' % (w, t, s))
        for td in range(3):
            self.cvt_v(t, td, acc[td], 'cvtV w%d t%d' % (w, t))

    def s_tile(self, w, q, slot):
        sp = SP[slot]
        for kt in range(3):
            self.p.ds('ds_read_b128 %s, %s offset:%d' % (v(sp + 4 * kt, 4), v(L16B), (q * 3 + kt) * 1024),
                      [v(L16B)], [v(sp + 4 * kt, 4)], 'bias w%d q%d' % (w, q), after=self.bt_writes)
        self.p.ds('ds_read_b32 %s, %s offset:%d' % (v(sp + 12), v(L16B), 12288 + 4 * q),
                  [v(L16B)], [v(sp + 12)], 'biasE w%d q%d' % (w, q), after=self.bt_writes)
        self.va('v_cndmask_b32 %s, %s, %s, %s' % (v(sp + 12), v(NEG), v(sp + 12), S_MG(w)),
                [v(NEG), v(sp + 12), S_MG(w)], [v(sp + 12)], 'maskE')
        for kt in range(4):
            a = v(sp + 4 * kt, 4)
            self.p.mfma(a, KA(kt), QA(q), a, 'S w%d q%d' % (w, q))
        for kt in range(4):
            a = v(sp + 4 * kt, 4)
            self.p.mfma(a, KB(kt), QB(q), a, 'S w%d q%d' % (w, q))

    def softmax(self, w, q, slot):
        va = self.va
        sp = SP[slot]
        s = [v(sp + i) for i in range(13)]
        m, t = v(sp + 13), v(sp + 14)
        tag = 'SM w%d q%d' % (w, q)
        if self.truemax:
            va('v_max3_f32 %s, %s, %s, %s' % (m, s[0], s[1], s[2]), s[0:3], [m], tag)
            va('v_max3_f32 %s, %s, %s, %s' % (t, s[3], s[4], s[5]), s[3:6], [t], tag)
            va('v_max3_f32 %s, %s, %s, %s' % (m, m, s[6], s[7]), [m, s[6], s[7]], [m], tag)
            va('v_max3_f32 %s, %s, %s, %s' % (t, t, s[8], s[9]), [t, s[8], s[9]], [t], tag)
            va('v_max3_f32 %s, %s, %s, %s' % (m, m, s[10], s[11]), [m, s[10], s[11]], [m], tag)
            va('v_max3_f32 %s, %s, %s, %s' % (m, m, t, s[12]), [m, t, s[12]], [m], tag)
            for sw in ('v_permlane32_swap_b32', 'v_permlane16_swap_b32'):
                va('v_mov_b32 %s, %s' % (t, m), [m], [t], tag)
                va('%s %s, %s' % (sw, m, t), [m, t], [m, t], tag, kind='swap')
                va('v_max_f32 %s, %s, %s' % (m, m, t), [m, t], [m], tag)
            va('v_mul_f32 %s, %s, %s' % (m, S_C, m), [S_C, m], [m], tag)
            for x in s:
                va('v_fma_f32 %s, %s, %s, -%s' % (x, x, S_C, m), [x, S_C, m], [x], tag)
                va('v_exp_f32 %s, %s' % (x, x), [x], [x], tag, kind='trans')
        else:
            for x in s:
                va('v_mul_f32 %s, %s, %s' % (x, S_C, x), [x, S_C], [x], tag)
                va('v_exp_f32 %s, %s' % (x, x), [x], [x], tag, kind='trans')
        for i in range(6):
            self.cvt(v(sp + i), s[2 * i], s[2 * i + 1], tag)
        self.cvt(v(sp + 6), s[12], '0', tag)
        va('v_mov_b32 %s, 0' % v(sp + 7), [], [v(sp + 7)], tag)

    def pv(self, w, q, slot):
        sp, ox = SP[slot], OX[slot]
        acc = [sp + 8, sp + 12, ox]
        p0, p1 = v(sp, 4), v(sp + 4, 4)
        tag = 'PV w%d q%d' % (w, q)
        sm = v(ox + 4, 4)
        self.p.mfma(sm, ONES, p0, '0', tag)
        for td in range(3):
            self.p.mfma(v(acc[td], 4), VV(td, 0), p0, '0', tag)
        self.p.mfma(sm, ONES, p1, sm, tag)
        for td in range(3):
            self.p.mfma(v(acc[td], 4), VV(td, 1), p1, v(acc[td], 4), tag)

    def post(self, w, q, slot, after):
        va = self.va
        sp, ox = SP[slot], OX[slot]
        acc = [sp + 8, sp + 12, ox]
        r = v(ox + 4)
        tag = 'post w%d q%d' % (w, q)
        if not self.truemax:
            t = v(ox + 5)
            va('v_subrev_u32 %s, 0x1f800000, %s' % (t, r), [r], [t], tag)
            va('v_cmp_lt_u32 vcc, 0x40000000, %s' % t, [t], ['vcc'], tag)
            if q == 3:
                self.sa(['s_and_b64 vcc, vcc, %s' % S_MN(w), 's_or_b64 %s, %s, vcc' % (S_BAD, S_BAD)],
                        ['vcc', S_MN(w), S_BAD], [S_BAD, 'vcc'], tag)
            else:
                self.sa('s_or_b64 %s, %s, vcc' % (S_BAD, S_BAD), ['vcc', S_BAD], [S_BAD], tag)
        va('v_rcp_f32 %s, %s' % (r, r), [r], [r], tag, kind='trans')
        for td in range(3):
            for i in range(4):
                x = v(acc[td] + i)
                va('v_mul_f32 %s, %s, %s' % (x, x, r), [x, r], [x], tag)
        d = sp + 8
        self.cvt(v(d), v(acc[0]), v(acc[0] + 1), tag)
        self.cvt(v(d + 1), v(acc[0] + 2), v(acc[0] + 3), tag)
        self.cvt(v(d + 2), v(acc[1]), v(acc[1] + 1), tag)
        self.cvt(v(d + 3), v(acc[1] + 2), v(acc[1] + 3), tag)
        self.cvt(v(ox), v(ox), v(ox + 1), tag)
        self.cvt(v(ox + 1), v(ox + 2), v(ox + 3), tag)
        if q == 3:
            txt = ['s_mov_b64 exec, %s' % S_MN(w),
                   'ds_write_b128 %s, %s offset:%d' % (v(OW128), v(d, 4), OE_OFF),
                   'ds_write_b64 %s, %s offset:%d' % (v(OW64), v(ox, 2), OE_OFF),
                   's_mov_b64 exec, -1']
            op = self.p.ds(txt, [v(OW128), v(OW64), v(d, 4), v(ox, 2), S_MN(w)], [], tag, nasync=2, after=after)
            self.owrites['E'].append(op)
        else:
            off = OB_OFF[w & 1] + q * 6144
            self.owrites[w].append(self.p.ds('ds_write_b128 %s, %s offset:%d' % (v(OW128), v(d, 4), off),
                                             [v(OW128), v(d, 4)], [], tag, after=after))
            self.owrites[w].append(self.p.ds('ds_write_b64 %s, %s offset:%d' % (v(OW64), v(ox, 2), off),
                                             [v(OW64), v(ox, 2)], [], tag, after=after))

    def out_offsets(self):
        va = self.va
        L, N, G, TK, Y, X_, A = [v(FR[4] + i) for i in range(4)] + [v(FR[5] + i) for i in range(3)]
        self.lane_ids(L, N, G)
        self.sa(['s_lshl_b32 s82, s36, 6', 's_lshl_b32 s83, s36, 5', 's_add_u32 s83, s83, 256'], [S_H], ['s82', 's83'])
        for t in range(3):
            va('v_add_u32 %s, %d, %s' % (TK, 16 * t, N), [N], [TK], 'ooff')
            self.div7(Y, X_, TK, A)
            d = v(OO4[t])
            self.pixoff(d, Y, X_, A)
            self.wrapy(d, A)
            va('v_lshl_add_u32 %s, %s, 3, %s' % (v(OO2[t]), G, d), [G, d], [v(OO2[t])], 'ooff')
            va('v_add_u32 %s, s83, %s' % (v(OO2[t]), v(OO2[t])), ['s83', v(OO2[t])], [v(OO2[t])], 'ooff')
            va('v_lshl_add_u32 %s, %s, 4, %s' % (d, G, d), [G, d], [d], 'ooff')
            va('v_add_u32 %s, s82, %s' % (d, d), ['s82', d], [d], 'ooff')

    def out_adjust(self):
        a = v(FR[5])
        for t in range(3):
            self.va('v_bfe_u32 %s, %s, %d, 1' % (a, v(FX), 16 + t), [v(FX)], [a], 'oadj')
            self.va('v_mul_u32_u24 %s, s74, %s' % (a, a), [S_ADJ, a], [a], 'oadj')
            self.va('v_sub_u32 %s, %d, %s' % (a, 3 * WINB, a), [a], [a], 'oadj')
            self.va('v_add_u32 %s, %s, %s' % (v(OO4[t]), v(OO4[t]), a), [v(OO4[t]), a], [v(OO4[t])], 'oadj')
            self.va('v_add_u32 %s, %s, %s' % (v(OO2[t]), v(OO2[t]), a), [v(OO2[t]), a], [v(OO2[t])], 'oadj')

    def out_offsets_e(self):
        va = self.va
        L, N, G, A, B = [v(FR[4] + i) for i in range(4)] + [v(FR[5])]
        self.lane_ids(L, N, G)
        d4, d2 = v(OO4[0]), v(OO2[0])
        self.sa(['s_add_u32 s78, s40, %d' % (6 * ROWB + 6 * 384), 's_mul_i32 s79, s39, %d' % TOTAL,
                 's_sub_u32 s78, s78, s79'], [S_BASE, S_TY], ['s78', 's79'])
        va('v_lshrrev_b32 %s, 2, %s' % (A, N), [N], [A], 'eoff')
        va('v_mul_u32_u24 %s, %d, %s' % (d4, WINB, A), [A], [d4], 'eoff')
        va('v_add_u32 %s, s78, %s' % (d4, d4), ['s78', d4], [d4], 'eoff')
        va('v_cmp_eq_u32 vcc, 3, %s' % A, [A], ['vcc'], 'eoff')
        va('v_mov_b32 %s, s74' % B, [S_ADJ], [B], 'eoff')
        va('v_cndmask_b32 %s, 0, %s, vcc' % (B, B), [B, 'vcc'], [B], 'eoff')
        va('v_sub_u32 %s, %s, %s' % (d4, d4, B), [d4, B], [d4], 'eoff')
        va('v_lshl_add_u32 %s, %s, 3, %s' % (d2, G, d4), [G, d4], [d2], 'eoff')
        va('v_add_u32 %s, s83, %s' % (d2, d2), ['s83', d2], [d2], 'eoff')
        va('v_lshl_add_u32 %s, %s, 4, %s' % (d4, G, d4), [G, d4], [d4], 'eoff')
        va('v_add_u32 %s, s82, %s' % (d4, d4), ['s82', d4], [d4], 'eoff')

    def out_tile(self, w, t, after):
        isE = (w == 'E')
        base = OE_OFF if isE else OB_OFF[w & 1] + t * 6144
        tag = 'OUT w%s t%d' % (w, t)
        acc = ACCO
        for f in range(6):
            fr = self.fr.next()
            op = self.p.ds('ds_read_b128 %s, %s offset:%d' % (v(fr, 4), v(L16O), base + 1024 * f),
                           [v(L16O)], [v(fr, 4)], tag, after=after)
            self.oreads[w].append(op)
            for tc in range(3):
                k, b = WO(tc, f)
                a = v(acc[tc], 4)
                self.p.mfma(a, rng(k, b, 4), v(fr, 4), a if f else '0', tag)
        d = acc[0]
        self.cvt(v(d), v(acc[0]), v(acc[0] + 1), tag)
        self.cvt(v(d + 1), v(acc[0] + 2), v(acc[0] + 3), tag)
        self.cvt(v(d + 2), v(acc[1]), v(acc[1] + 1), tag)
        self.cvt(v(d + 3), v(acc[1] + 2), v(acc[1] + 3), tag)
        self.cvt(v(acc[1]), v(acc[2]), v(acc[2] + 1), tag)
        self.cvt(v(acc[1] + 1), v(acc[2] + 2), v(acc[2] + 3), tag)
        o4, o2 = (v(OO4[0]), v(OO2[0])) if isE else (v(OO4[t]), v(OO2[t]))
        so = '0' if isE else S_WOFF[w]
        s4 = 'buffer_store_dwordx4 %s, %s, %s, %s offen %s' % (v(d, 4), o4, S_OUT, so, self.st4)
        s2 = 'buffer_store_dwordx2 %s, %s, %s, %s offen %s' % (v(acc[1], 2), o2, S_OUT, so, self.st2)
        rdx = [S_OUT] + ([so] if so != '0' else [])
        if isE:
            self.p.vmem(['s_mov_b64 exec, %s' % S_ME, s4.strip(), s2.strip(), 's_mov_b64 exec, -1'],
                        [v(d, 4), v(acc[1], 2), o4, o2, S_ME] + rdx, [], tag, nasync=2,
                        store_data=[v(d, 4), v(acc[1], 2)], lat=800)
        else:
            self.p.vmem(s4.strip(), [v(d, 4), o4] + rdx, [], tag, store_data=[v(d, 4)], lat=800)
            self.p.vmem(s2.strip(), [v(acc[1], 2), o2] + rdx, [], tag, store_data=[v(acc[1], 2)], lat=800)

    def build(self):
        p = self.p
        self.xe_reads = []
        self.early()
        self.scalars()
        self.addresses()
        b0 = p.barrier(after_done=self.xdma[0] + [self.xe_dma], tag='bx0')
        self.stamp([b0], 'bx0')
        self.mask_consts()
        self.bias_table()
        self.pass_smajor('K', 0, [b0])
        self.pass_smajor('Q', 0, [b0])
        self.x_dma(1)
        self.s_tile(0, 3, 0)
        self.s_tile(0, 0, 1)
        self.softmax(0, 3, 0)
        self.softmax(0, 0, 1)
        self.pass_smajor('V', 0, [b0])
        for u in (18, 19, 20):
            self.stage_dma(u)
        self.va('v_mov_b32 v88, 0x3f803f80', [], ['v88'])
        for i in (89, 90, 91):
            self.va('v_mov_b32 v%d, 0x3f803f80' % i, [], ['v%d' % i])
        bar = p.barrier(after_done=self.xdma[1] + self.xreads[0] + self.xe_reads + self.stage_reads, tag='b0')
        self.stamp([bar], 'b0')
        for w in range(4):
            last = (w == 3)
            if w + 2 < 4:
                if w + 2 == 3:
                    self.x_adjust()
                self.x_dma(w + 2, after=[bar])
            self.pv(w, 3, 0)
            self.pv(w, 0, 1)
            self.post(w, 3, 0, [bar])
            self.post(w, 0, 1, [bar])
            if w == 0:
                for u in range(18, 24):
                    self.stage_read(u)
                    if u + 3 < 24:
                        self.stage_dma(u + 3)
            self.s_tile(w, 1, 0)
            self.s_tile(w, 2, 1)
            if not last:
                if w + 1 == 3:
                    self.y_consts(True)
                self.kq_tile(w + 1, 0, [bar])
            self.softmax(w, 1, 0)
            self.softmax(w, 2, 1)
            if not last:
                self.kq_tile(w + 1, 1, [bar])
                self.kq_tile(w + 1, 2, [bar])
            if w == 0:
                self.out_offsets()
            if last:
                for t in range(3):
                    self.out_tile(2, t, [bar])
                self.out_adjust()
                barx = p.barrier(after_done=self.owrites[3] + self.owrites['E'], tag='bx')
                self.stamp([barx], 'bx')
            self.pv(w, 1, 0)
            self.pv(w, 2, 1)
            self.post(w, 1, 0, [bar])
            self.post(w, 2, 1, [bar])
            if not last:
                self.s_tile(w + 1, 3, 0)
                self.s_tile(w + 1, 0, 1)
                for t in range(3):
                    self.v_tile(w + 1, t, [bar])
                    if w >= 1:
                        self.out_tile(w - 1, t, [bar])
                self.softmax(w + 1, 3, 0)
                self.softmax(w + 1, 0, 1)
                deps = self.owrites[w] + self.xreads[w + 1] + (self.xdma[w + 2] if w + 2 < 4 else [])
                if w >= 1:
                    deps += self.oreads[w - 1]
                if w == 0:
                    deps += self.stage_reads
                deps += self.owrites['E']
                bar = p.barrier(after_done=deps, tag='b%d' % (w + 1))
                self.stamp([bar], 'b%d' % (w + 1))
            else:
                self.out_tile(3, 0, [barx])
                bar = p.barrier(after_done=self.owrites[3], tag='bend')
                self.stamp([bar], 'bend')
                self.out_tile(3, 1, [bar])
                self.out_tile(3, 2, [bar])
                self.out_offsets_e()
                self.out_tile('E', 3, [barx])
        return p


def make(truemax=True, sequential=False, st4='', st2='', comments=False, dbg=None, codepf=False, **skw):
    g = Gen(truemax=truemax, st4=st4, st2=st2, dbg=dbg, codepf=codepf)
    p = g.build()
    sch = Scheduler(p.ops, sequential=sequential, **skw)
    out = sch.run()
    verify(out)
    body = render(out, comments)
    n_mfma = sum(1 for o in p.ops if o.kind == 'mfma')
    info = dict(n_ops=len(p.ops), n_mfma=n_mfma, cycles=sch.t, stall=sch.stall,
                n_instr=len(body))
    info['stamps'] = g.stamps
    return g.entry_text(), body + g.exit_text(), info


HEADER = """; Fused Swin window attention (QKV projection, shifted-window attention, output projection), gfx950.
; Generated by gen/kernel_gen.py (hand-designed dataflow, list-scheduled).
; kernarg: x, wqkv, wo, rpb, rp_idx, attn_mask, out, debug, ws
; @launch grid=(256,1,1) block=(256,1,1) lds=%d
.amdgcn_target "amdgcn-amd-amdhsa--gfx950"
.text
.globl {k}
.p2align 8
.type {k},@function
{k}:
""".replace('{k}', KNAME) % LDS_BYTES

FOOTER = """L_end:
    s_endpgm
.section .rodata,"a"
.p2align 6
.amdhsa_kernel {k}
  .amdhsa_next_free_vgpr 512
  .amdhsa_next_free_sgpr 102
  .amdhsa_accum_offset 256
  .amdhsa_group_segment_fixed_size 0
  .amdhsa_kernarg_size 72
  .amdhsa_user_sgpr_count 2
  .amdhsa_user_sgpr_kernarg_segment_ptr 1
  .amdhsa_system_sgpr_workgroup_id_x 1
.end_amdhsa_kernel
""".replace('{k}', KNAME)


def write(path, **kw):
    entry, body, info = make(**kw)
    with open(path, 'w') as f:
        f.write(HEADER)
        f.write('\n'.join(entry) + '\n')
        f.write('\n'.join(body) + '\n')
        f.write(FOOTER)
    return info


if __name__ == '__main__':
    import argparse
    ap = argparse.ArgumentParser()
    ap.add_argument('-o', default='standalone__window_attn_swin__vision.s')
    ap.add_argument('--seq', action='store_true')
    ap.add_argument('--nomax', action='store_true')
    ap.add_argument('--comments', action='store_true')
    ap.add_argument('--st4', default='')
    ap.add_argument('--st2', default='')
    ap.add_argument('--dbg', action='store_true')
    ap.add_argument('--codepf', action='store_true')
    a = ap.parse_args()
    print(write(a.o, truemax=not a.nomax, sequential=a.seq, st4=a.st4, st2=a.st2, comments=a.comments,
                dbg=(0, 133) if a.dbg else None, codepf=a.codepf))
```
